```python
import torch

def _softmax(x, axis=-1):
    return torch.softmax(x, dim=axis)

def _gelu(x):
    return torch.nn.functional.gelu(x, approximate='tanh')

def _silu(x):
    return torch.nn.functional.silu(x)

def _sigmoid(x):
    return torch.sigmoid(x)

def _layernorm(x, axis=-1, eps=1e-05):
    m = x.mean(dim=axis, keepdim=True)
    v = x.var(dim=axis, keepdim=True, unbiased=False)
    return (x - m) / torch.sqrt(v + eps)

def _scatter_add(tgt, idx, src, axis=0):
    return tgt.clone().index_add_(axis, idx, src)

def _segment_sum(src, seg, n):
    out = torch.zeros((n,) + src.shape[1:], dtype=src.dtype)
    return out.index_add_(0, seg, src)

def _pad(x, pw):
    flat = tuple((v for pair in reversed(pw) for v in pair))
    return torch.nn.functional.pad(x, flat)
kernel_name = 'adaLN_cond__ssm_conv_h3__mixer_gmlp__prompt'

def setup_inputs():

    _w = lambda a: (lambda t: t.to(torch.bfloat16) if t.is_floating_point() else t)(torch.as_tensor(a))

    def _A_setup():
        B, S, D = (1, 2048, 448)
        ks = 4
        return {'q': _w((lambda *s: torch.randn(*s, dtype=torch.bfloat16) * 0.05)(B, S, D)), 'k': _w((lambda *s: torch.randn(*s, dtype=torch.bfloat16) * 1.6)(B, S, D)), 'v': _w((lambda *s: torch.randn(*s, dtype=torch.bfloat16) * 1.6)(B, S, D)), 'shift_k': _w((lambda *s: torch.randn(*s, dtype=torch.bfloat16) * 1.6)(D, ks) * 0.5), 'ssm_k': _w((lambda *s: torch.randn(*s, dtype=torch.bfloat16) * 1.6)(D, S) * (1.0 / S ** 0.5)), 'ssm_D': _w((lambda *s: torch.randn(*s, dtype=torch.bfloat16) * 1.6)(D))}
    _A_in = _A_setup()

    def _B_setup():
        B, S, D, F = (1, 2048, 448, 1792)
        Fh = F // 2
        return {'x': _w((lambda *s: torch.randn(*s, dtype=torch.bfloat16) * 0.05)(B, S, D)), 'w_in': _w((lambda *s: torch.randn(*s, dtype=torch.bfloat16) * 0.8)(D, 2 * Fh)), 'w_sp': _w(0.01 * (lambda *s: torch.randn(*s, dtype=torch.bfloat16) * 0.8)(S, S)), 'b_sp': _w(1.0 + 0.01 * (lambda *s: torch.randn(*s, dtype=torch.bfloat16) * 0.1)(S)), 'w_out': _w((lambda *s: torch.randn(*s, dtype=torch.bfloat16) * 0.1)(Fh, D))}
    _B_in = _B_setup()
    return {'A_q': _A_in['q'], 'A_k': _A_in['k'], 'A_v': _A_in['v'], 'A_shift_k': _A_in['shift_k'], 'A_ssm_k': _A_in['ssm_k'], 'A_ssm_D': _A_in['ssm_D'], 'B_x': _B_in['x'], 'B_w_in': _B_in['w_in'], 'B_w_sp': _B_in['w_sp'], 'B_b_sp': _B_in['b_sp'], 'B_w_out': _B_in['w_out'], 'c': _w((lambda *s: torch.randn(*s, dtype=torch.bfloat16) * 0.1)(1, 448) * 8.0), 'w_mod': _w((lambda *s: torch.randn(*s, dtype=torch.bfloat16) * 0.1)(448, 6 * 448) * 448 ** (-0.5) * 8.0)}

def reference(A_q, A_k, A_v, A_shift_k, A_ssm_k, A_ssm_D, B_x, B_w_in, B_w_sp, B_b_sp, B_w_out, c, w_mod):

    def _A_ref(q, k, v, shift_k, ssm_k, ssm_D):
        B, S, D = q.shape
        ks = shift_k.shape[-1]
        k_pad = _pad(k, ((0, 0), (ks - 1, 0), (0, 0)))
        k_shift = torch.zeros_like(k)
        for t in range(ks):
            k_shift = k_shift + k_pad[:, t:t + S, :] * shift_k[:, ks - 1 - t][None, None, :]
        kv = k_shift * v
        L = 2 * S
        kv_pad = _pad(kv, ((0, 0), (0, S), (0, 0)))
        kf_pad = _pad(ssm_k, ((0, 0), (0, S)))
        kv_f = (lambda x, axes=(-2, -1): torch.fft.rfft2(x.float(), dim=axes))(kv_pad[:, None, :, :], axes=(1, 2))
        kf_f = (lambda x, axes=(-2, -1): torch.fft.rfft2(x.float(), dim=axes))(kf_pad[:, None, :], axes=(1, 2))
        kf_f = (lambda x, *d: x.permute(*d))(kf_f, 1, 2, 0)
        y_f = kv_f * kf_f[None, :, :, :]
        y = (lambda x, s, axes=(-2, -1): torch.fft.irfft2(x, s=s, dim=axes).to(torch.bfloat16))(y_f, (1, L), axes=(1, 2))[:, 0, :S, :]
        y = y + kv * ssm_D[None, None, :]
        return q * y

    def _B_ref(x, w_in, w_sp, b_sp, w_out):
        B, S, D = x.shape
        F = w_in.shape[-1]
        Fh = F // 2
        z = _gelu(torch.einsum('bsd,df->bsf', x, w_in))
        z1 = z[..., :Fh].clone()
        z2 = _layernorm(z[..., Fh:], axis=-1)
        g = torch.einsum('ts,bsf->btf', w_sp, z2) + b_sp[None, :, None]
        return torch.einsum('bsf,fd->bsd', z1 * g, w_out)
    x = A_q
    mod = (_silu(c) @ w_mod).reshape(c.shape[0], 6, 1, -1)
    sa, ca, ga, sb, cb, gb = (mod[:, 0].clone(), mod[:, 1].clone(), mod[:, 2].clone(), mod[:, 3].clone(), mod[:, 4].clone(), mod[:, 5].clone())
    h = _layernorm(x, axis=-1) * (1 + ca) + sa
    x = x + ga * _A_ref(h, A_k, A_v, A_shift_k, A_ssm_k, A_ssm_D)
    h = _layernorm(x, axis=-1) * (1 + cb) + sb
    x = x + gb * _B_ref(h, B_w_in, B_w_sp, B_b_sp, B_w_out)
    return x
```

```python
class Asm:
    def __init__(self):
        self.lines = []
        self.uid = 0
    def e(self, s):
        self.lines.append("    " + s)
    def c(self, s):
        self.lines.append("    ; " + s)
    def label(self, name):
        self.lines.append(name + ":")
    def newlabel(self, base="L"):
        self.uid += 1
        return f"{base}_{self.uid}"
    def raw(self, s):
        self.lines.append(s)
    def text(self):
        return "\n".join(self.lines) + "\n"

P_Q, P_K, P_V, P_SHIFT, P_SSMK, P_SSMD, P_BX, P_WIN, P_WSP, P_BSP, P_WOUT, P_C, P_WMOD, P_OUT, P_DBG, P_WS = range(16)

S = 2048; D = 448; F = 1792; FH = 896

WS_MOD   = 0x0
WS_KVT   = 0x10000
WS_UT    = WS_KVT + 0x200000
WS_X1    = WS_UT + 0x200000
WS_WINT  = WS_X1 + 0x200000
WS_WOUTT = WS_WINT + 0x200000
WS_Z1    = WS_WOUTT + 0x200000
WS_Z2T   = WS_Z1 + 0x400000
WS_M     = WS_Z2T + 0x400000
WS_END   = WS_M + 0x400000

def kernel_header(a, name):
    a.raw(f".globl {name}")
    a.raw(".p2align 8")
    a.raw(f".type {name},@function")
    a.label(name)

def kernel_desc(name, vgpr, sgpr=102, accum=None):
    if accum is None:
        accum = (vgpr + 3) // 4 * 4
    return f""".p2align 6
.amdhsa_kernel {name}
  .amdhsa_next_free_vgpr {vgpr}
  .amdhsa_next_free_sgpr {sgpr}
  .amdhsa_accum_offset {accum}
  .amdhsa_group_segment_fixed_size 0
  .amdhsa_kernarg_size 128
  .amdhsa_user_sgpr_count 2
  .amdhsa_user_sgpr_kernarg_segment_ptr 1
  .amdhsa_system_sgpr_workgroup_id_x 1
.end_amdhsa_kernel
"""

def load_ptr(a, sdst, idx):
    a.e(f"s_load_dwordx2 s[{sdst}:{sdst+1}], s[0:1], {idx*8}")

def make_srd(a, r, sptr, offset, size):
    if offset:
        a.e(f"s_add_u32 s{r}, s{sptr}, {offset}")
        a.e(f"s_addc_u32 s{r+1}, s{sptr+1}, 0")
    else:
        a.e(f"s_mov_b32 s{r}, s{sptr}")
        a.e(f"s_mov_b32 s{r+1}, s{sptr+1}")
    a.e(f"s_mov_b32 s{r+2}, {size}")
    a.e(f"s_mov_b32 s{r+3}, 0x00020000")
```

```python
from common import *

def cvt_unpack(a, dpk, lo, hi, dlo, dhi):
    a.e(f"v_cvt_pk_bf16_f32 v{dpk}, v{lo}, v{hi}")
    a.e(f"v_lshlrev_b32 v{dlo}, 16, v{dpk}")
    a.e(f"v_and_b32 v{dhi}, 0xffff0000, v{dpk}")

def gen_k0(a):
    name = "prep_kernel"
    kernel_header(a, name)
    load_ptr(a, 4, P_K); load_ptr(a, 6, P_V); load_ptr(a, 8, P_SHIFT); load_ptr(a, 10, P_WS)
    load_ptr(a, 12, P_C); load_ptr(a, 14, P_WMOD); load_ptr(a, 16, P_WIN); load_ptr(a, 18, P_WOUT)
    a.e("s_mov_b32 s36, 0x05040100")
    a.e("s_mov_b32 s37, 0x07060302")
    a.e("s_waitcnt lgkmcnt(0)")
    L_mod, L_win, L_wout, L_end = a.newlabel("K0_mod"), a.newlabel("K0_win"), a.newlabel("K0_wout"), a.newlabel("K0_end")
    a.e("s_cmp_ge_u32 s2, 676")
    a.e(f"s_cbranch_scc1 {L_end}")
    a.e("s_cmp_ge_u32 s2, 564")
    a.e(f"s_cbranch_scc1 {L_wout}")
    a.e("s_cmp_ge_u32 s2, 340")
    a.e(f"s_cbranch_scc1 {L_win}")
    a.e("s_cmp_ge_u32 s2, 256")
    a.e(f"s_cbranch_scc1 {L_mod}")
    a.c("kv job: rows s0..s0+7, s0 = 8*wg ; thread p<224 handles channels 2p,2p+1")
    make_srd(a, 20, 4, 0, S*D*2)
    make_srd(a, 24, 6, 0, S*D*2)
    make_srd(a, 28, 8, 0, D*4*2)
    make_srd(a, 32, 10, WS_KVT, D*S*2)
    a.e("v_cmp_gt_u32 vcc, 224, v0")
    a.e("s_and_saveexec_b64 s[40:41], vcc")
    a.e(f"s_cbranch_execz {L_end}")
    a.e("v_lshlrev_b32 v1, 2, v0")
    a.e("s_mul_i32 s38, s2, 7168")
    a.e("s_sub_u32 s38, s38, 2688")
    for i in range(11):
        a.e(f"v_add_u32 v2, s38, v1")
        a.e(f"buffer_load_dword v{10+i}, v2, s[20:23], 0 offen")
        if i >= 3:
            a.e(f"buffer_load_dword v{21+i-3}, v2, s[24:27], 0 offen")
        a.e("s_add_u32 s38, s38, 896")
    a.e("v_lshlrev_b32 v2, 4, v0")
    a.e("buffer_load_dwordx4 v[30:33], v2, s[28:31], 0 offen")
    a.e("s_waitcnt vmcnt(0)")
    for ch in range(2):
        for j in range(4):
            src = 30 + ch*2 + j//2
            dst = 34 + ch*4 + j
            if j % 2 == 0:
                a.e(f"v_lshlrev_b32 v{dst}, 16, v{src}")
            else:
                a.e(f"v_and_b32 v{dst}, 0xffff0000, v{src}")
    for i in range(11):
        a.e(f"v_lshlrev_b32 v{50+i}, 16, v{10+i}")
        a.e(f"v_and_b32 v{61+i}, 0xffff0000, v{10+i}")
    for i in range(8):
        a.e(f"v_lshlrev_b32 v{72+i}, 16, v{21+i}")
        a.e(f"v_and_b32 v{80+i}, 0xffff0000, v{21+i}")
    for s in range(8):
        a.e(f"v_mul_f32 v2, v{50+s}, v{34+3}")
        a.e(f"v_mul_f32 v3, v{61+s}, v{38+3}")
        cvt_unpack(a, 4, 2, 3, 5, 6)
        for (j, idx) in [(2, s+1), (1, s+2), (0, s+3)]:
            a.e(f"v_mul_f32 v2, v{50+idx}, v{34+j}")
            a.e(f"v_mul_f32 v3, v{61+idx}, v{38+j}")
            cvt_unpack(a, 4, 2, 3, 7, 8)
            a.e("v_add_f32 v5, v5, v7")
            a.e("v_add_f32 v6, v6, v8")
            cvt_unpack(a, 4, 5, 6, 5, 6)
        a.e(f"v_mul_f32 v2, v5, v{72+s}")
        a.e(f"v_mul_f32 v3, v6, v{80+s}")
        a.e(f"v_cvt_pk_bf16_f32 v{90+s}, v2, v3")
    for j in range(4):
        a.e(f"v_perm_b32 v{100+j}, v{90+2*j+1}, v{90+2*j}, s36")
        a.e(f"v_perm_b32 v{104+j}, v{90+2*j+1}, v{90+2*j}, s37")
    a.e("v_lshlrev_b32 v2, 13, v0")
    a.e("s_lshl_b32 s39, s2, 4")
    a.e("v_add_u32 v2, s39, v2")
    a.e("buffer_store_dwordx4 v[100:103], v2, s[32:35], 0 offen")
    a.e("v_add_u32 v3, 4096, v2")
    a.e("buffer_store_dwordx4 v[104:107], v3, s[32:35], 0 offen")
    a.e(f"s_branch {L_end}")
    a.label(L_mod)
    a.c("mod job: wg j=s2-256 handles columns 32j..32j+31")
    make_srd(a, 20, 12, 0, D*2)
    make_srd(a, 24, 14, 0, D*2688*2)
    make_srd(a, 32, 10, WS_MOD, 2688*4)
    a.e("s_sub_u32 s38, s2, 256")
    a.e("s_lshl_b32 s38, s38, 6")
    a.e("v_lshrrev_b32 v1, 4, v0")
    a.e("v_and_b32 v2, 15, v0")
    a.e("v_mul_u32_u24 v3, 56, v1")
    for i in range(14):
        a.e(f"buffer_load_dword v{10+i}, v3, s[20:23], 0 offen offset:{4*i}")
    a.e("s_mov_b32 s39, 150528")
    a.e("v_mul_lo_u32 v4, v1, s39")
    a.e("v_lshlrev_b32 v5, 2, v2")
    a.e("v_add_u32 v4, v4, v5")
    a.e("v_add_u32 v4, s38, v4")
    for i in range(28):
        a.e(f"buffer_load_dword v{30+i}, v4, s[24:27], 0 offen")
        if i < 27:
            a.e("v_add_u32 v4, 5376, v4")
    a.e("s_waitcnt vmcnt(28)")
    for i in range(28):
        src = 10 + i//2
        d = 60 + i
        if i % 2 == 0:
            a.e(f"v_lshlrev_b32 v{d}, 16, v{src}")
        else:
            a.e(f"v_and_b32 v{d}, 0xffff0000, v{src}")
        a.e(f"v_mul_f32 v5, 0xbfb8aa3b, v{d}")
        a.e("v_exp_f32 v5, v5")
        a.e("s_nop 0")
        a.e("v_add_f32 v5, 1.0, v5")
        a.e("v_rcp_f32 v6, v5")
        a.e("s_nop 0")
        a.e(f"v_mul_f32 v7, v{d}, v6")
        a.e(f"v_fma_f32 v8, -v7, v5, v{d}")
        a.e(f"v_fma_f32 v7, v8, v6, v7")
        a.e(f"v_cvt_pk_bf16_f32 v7, v7, v7")
        a.e(f"v_lshlrev_b32 v{d}, 16, v7")
    a.e("s_waitcnt vmcnt(0)")
    a.e("v_mov_b32 v88, 0")
    a.e("v_mov_b32 v89, 0")
    for i in range(28):
        a.e(f"v_lshlrev_b32 v7, 16, v{30+i}")
        a.e(f"v_and_b32 v8, 0xffff0000, v{30+i}")
        a.e(f"v_fmac_f32 v88, v{60+i}, v7")
        a.e(f"v_fmac_f32 v89, v{60+i}, v8")
    a.e("v_lshlrev_b32 v7, 7, v1")
    a.e("v_lshlrev_b32 v8, 3, v2")
    a.e("v_add_u32 v7, v7, v8")
    a.e("ds_write_b64 v7, v[88:89]")
    a.e("s_waitcnt lgkmcnt(0)")
    a.e("s_barrier")
    a.e("v_cmp_gt_u32 vcc, 32, v0")
    a.e("s_and_saveexec_b64 s[40:41], vcc")
    a.e(f"s_cbranch_execz {L_end}")
    a.e("v_lshlrev_b32 v7, 2, v0")
    for i in range(16):
        a.e(f"ds_read_b32 v{10+i}, v7 offset:{128*i}")
    a.e("s_waitcnt lgkmcnt(0)")
    for i in range(1, 16):
        a.e(f"v_add_f32 v10, v10, v{10+i}")
    a.e("v_cvt_pk_bf16_f32 v10, v10, v10")
    a.e("v_lshlrev_b32 v10, 16, v10")
    a.e("s_lshl_b32 s38, s38, 1")
    a.e("v_add_u32 v7, s38, v7")
    a.e("buffer_store_dword v10, v7, s[32:35], 0 offen")
    a.e(f"s_branch {L_end}")
    def transpose_job(label, wg0, sptr, rows, cols, ws_off, nq):
        a.label(label)
        make_srd(a, 20, sptr, 0, rows*cols*2)
        make_srd(a, 32, 10, ws_off, rows*cols*2)
        a.e("v_cmp_gt_u32 vcc, 224, v0")
        a.e("s_and_saveexec_b64 s[40:41], vcc")
        a.e(f"s_cbranch_execz {L_end}")
        a.e(f"s_sub_u32 s38, s2, {wg0}")
        if nq == 4:
            a.e("s_lshr_b32 s39, s38, 2")
            a.e("s_and_b32 s38, s38, 3")
        else:
            a.e("s_mov_b32 s39, s38")
            a.e("s_mov_b32 s38, 0")
        a.e(f"s_mul_i32 s42, s39, {8*cols*2}")
        a.e("s_mul_i32 s43, s38, 896")
        a.e("s_add_u32 s42, s42, s43")
        a.e("v_lshlrev_b32 v1, 2, v0")
        a.e("v_add_u32 v1, s42, v1")
        for i in range(8):
            a.e(f"buffer_load_dword v{10+i}, v1, s[20:23], 0 offen")
            if i < 7:
                a.e(f"v_add_u32 v1, {cols*2}, v1")
        a.e("s_waitcnt vmcnt(0)")
        for j in range(4):
            a.e(f"v_perm_b32 v{20+j}, v{10+2*j+1}, v{10+2*j}, s36")
            a.e(f"v_perm_b32 v{24+j}, v{10+2*j+1}, v{10+2*j}, s37")
        a.e("s_mul_i32 s43, s38, 224")
        a.e("v_add_u32 v1, s43, v0")
        a.e(f"s_mov_b32 s43, {rows*4}")
        a.e("v_mul_lo_u32 v1, v1, s43")
        a.e("s_lshl_b32 s39, s39, 4")
        a.e("v_add_u32 v1, s39, v1")
        a.e("buffer_store_dwordx4 v[20:23], v1, s[32:35], 0 offen")
        a.e(f"buffer_store_dwordx4 v[24:27], v1, s[32:35], 0 offen offset:{rows*2}")
        a.e(f"s_branch {L_end}")
    transpose_job(L_win, 340, 16, D, F, WS_WINT, 4)
    transpose_job(L_wout, 564, 18, FH, D, WS_WOUTT, 1)
    a.label(L_end)
    a.e("s_endpgm")
    return name, 676, 256, 2048, 128
```

```python
from common import *
CS = 4144
KZ = 0
KB = 4608
LDS_BYTES = KB + 8*CS

def gen_k1(a):
    name = "conv_kernel"
    kernel_header(a, name)
    L_end = a.newlabel("K1_end")
    a.e("s_cmp_ge_u32 s2, 448")
    a.e(f"s_cbranch_scc1 {L_end}")
    load_ptr(a, 4, P_SSMK); load_ptr(a, 6, P_SSMD); load_ptr(a, 8, P_WS)
    a.e("s_waitcnt lgkmcnt(0)")
    make_srd(a, 20, 4, 0, D*S*2)
    make_srd(a, 24, 6, 0, D*2)
    make_srd(a, 28, 8, WS_KVT, D*S*2)
    make_srd(a, 32, 8, WS_UT, D*S*2)
    a.e("s_lshl_b32 s3, s2, 12")
    a.e("v_lshlrev_b32 v1, 4, v0")
    a.e("v_add_u32 v2, s3, v1")
    a.e("buffer_load_dwordx4 v[4:7], v2, s[20:23], 0 offen")
    a.e("buffer_load_dwordx4 v[8:11], v2, s[28:31], 0 offen")
    a.e("s_lshl_b32 s12, s2, 1")
    a.e("v_mov_b32 v3, s12")
    a.e("buffer_load_ushort v12, v3, s[24:27], 0 offen")
    a.e("v_mov_b32 v13, 0")
    a.e("v_lshlrev_b32 v14, 1, v0")
    a.e("v_cmp_gt_u32 vcc, 240, v0")
    a.e("s_and_saveexec_b64 s[40:41], vcc")
    a.e("ds_write_b16 v14, v13")
    a.e("s_or_b64 exec, exec, s[40:41]")
    a.e("v_mul_u32_u24 v15, 0xaab, v0")
    a.e("v_lshrrev_b32 v15, 16, v15")
    a.e("v_mul_u32_u24 v16, 24, v15")
    a.e("v_sub_u32 v16, v0, v16")
    a.e(f"v_mul_u32_u24 v15, {CS}, v15")
    a.e("v_lshlrev_b32 v16, 1, v16")
    a.e("v_add_u32 v15, v15, v16")
    a.e("v_cmp_gt_u32 vcc, 192, v0")
    a.e("s_and_saveexec_b64 s[40:41], vcc")
    a.e(f"ds_write_b16 v15, v13 offset:{KB + 2*2040}")
    a.e("s_or_b64 exec, exec, s[40:41]")
    a.e("s_waitcnt lgkmcnt(0)")
    a.e("s_barrier")
    a.e("s_waitcnt vmcnt(0)")
    a.e("ds_write_b128 v1, v[8:11] offset:480")
    a.e("v_sub_u32 v15, 4080, v1")
    for i in range(8):
        src = 4 + i//2
        if i % 2 == 0:
            a.e(f"v_and_b32 v16, 0xffff, v{src}")
        else:
            a.e(f"v_lshrrev_b32 v16, 16, v{src}")
        for c in range(8):
            a.e(f"ds_write_b16 v15, v16 offset:{KB + c*(CS-2) + 14 - 2*i}")
    a.e("v_lshlrev_b32 v12, 16, v12")
    a.e("s_waitcnt lgkmcnt(0)")
    a.e("s_barrier")
    a.e("v_and_b32 v20, 15, v0")
    a.e("v_lshrrev_b32 v21, 4, v0")
    a.e("v_and_b32 v21, 3, v21")
    a.e("v_lshrrev_b32 v22, 6, v0")
    a.e("s_nop 0")
    a.e("v_readfirstlane_b32 s13, v22")
    a.e("v_sub_u32 v23, 15, v20")
    a.e("v_and_b32 v24, 7, v23")
    a.e(f"v_mul_u32_u24 v24, {CS}, v24")
    a.e("v_lshrrev_b32 v23, 3, v23")
    a.e("v_add_u32 v23, v23, v21")
    a.e("v_lshlrev_b32 v23, 4, v23")
    a.e("v_add_u32 v24, v24, v23")
    a.e(f"v_add_u32 v24, {KB + 3584}, v24")
    a.e("v_lshlrev_b32 v25, 5, v20")
    a.e("v_lshlrev_b32 v23, 4, v21")
    a.e("v_add_u32 v25, v25, v23")
    a.e("v_lshlrev_b32 v26, 5, v20")
    a.e("v_lshlrev_b32 v23, 3, v21")
    a.e("v_add_u32 v26, v26, v23")
    def tile(sI):
        Lp = a.newlabel("K1_loop")
        a.e(f"s_lshl_b32 s15, s{sI}, 9")
        a.e("v_subrev_u32 v27, s15, v24")
        a.e("v_mov_b32 v28, v25")
        a.e(f"s_add_u32 s16, s{sI}, 1")
        for r in range(4):
            a.e(f"v_mov_b32 v{100+r}, 0")
        a.label(Lp)
        for st in range(8):
            a.e(f"ds_read_b128 v[{32+8*st}:{35+8*st}], v27 offset:{64*st}")
            a.e(f"ds_read_b128 v[{36+8*st}:{39+8*st}], v28 offset:{64*st}")
        for st in range(8):
            a.e(f"s_waitcnt lgkmcnt({14-2*st})")
            a.e(f"v_mfma_f32_16x16x32_bf16 v[100:103], v[{32+8*st}:{35+8*st}], v[{36+8*st}:{39+8*st}], v[100:103]")
        a.e("v_add_u32 v27, 512, v27")
        a.e("v_add_u32 v28, 512, v28")
        a.e("s_sub_u32 s16, s16, 1")
        a.e("s_cmp_lg_u32 s16, 0")
        a.e(f"s_cbranch_scc1 {Lp}")
        a.e("v_add_u32 v29, s15, v26")
        a.e("ds_read_b64 v[30:31], v29 offset:480")
        a.e("s_nop 7")
        a.e("s_nop 1")
        a.e("s_waitcnt lgkmcnt(0)")
        for h in range(2):
            a.e(f"v_lshlrev_b32 v104, 16, v{30+h}")
            a.e(f"v_and_b32 v105, 0xffff0000, v{30+h}")
            a.e("v_mul_f32 v104, v104, v12")
            a.e("v_mul_f32 v105, v105, v12")
            a.e("v_cvt_pk_bf16_f32 v106, v104, v105")
            a.e("v_lshlrev_b32 v104, 16, v106")
            a.e("v_and_b32 v105, 0xffff0000, v106")
            a.e(f"v_cvt_pk_bf16_f32 v106, v{100+2*h}, v{101+2*h}")
            a.e("v_lshlrev_b32 v107, 16, v106")
            a.e("v_and_b32 v108, 0xffff0000, v106")
            a.e("v_add_f32 v104, v104, v107")
            a.e("v_add_f32 v105, v105, v108")
            a.e(f"v_cvt_pk_bf16_f32 v{110+h}, v104, v105")
        a.e("v_add_u32 v29, s3, v29")
        a.e("buffer_store_dwordx2 v[110:111], v29, s[32:35], 0 offen")
    a.e("s_mov_b32 s14, s13")
    tile(14)
    a.e("s_sub_u32 s14, 7, s13")
    tile(14)
    a.label(L_end)
    a.e("s_endpgm")
    return name, 448, 256, LDS_BYTES, 128
```

```python
from common import *
US = 904
HS = 912
L_U = 0
L_H2 = 14848
L_RED = L_H2 + 16*HS + 64
LDS_BYTES = L_RED + 512

def rnd(a, v):
    a.e(f"v_cvt_pk_bf16_f32 v{v}, v{v}, v{v}")
    a.e(f"v_lshlrev_b32 v{v}, 16, v{v}")

def rnd2(a, lo, hi, tmp):
    a.e(f"v_cvt_pk_bf16_f32 v{tmp}, v{lo}, v{hi}")
    a.e(f"v_lshlrev_b32 v{lo}, 16, v{tmp}")
    a.e(f"v_and_b32 v{hi}, 0xffff0000, v{tmp}")

def allreduce16(a, v, t):
    for sh in (8, 4, 2, 1):
        a.e("s_nop 1")
        a.e(f"v_add_f32_dpp v{t}, v{v}, v{v} row_ror:{sh} row_mask:0xf bank_mask:0xf")
        a.e(f"v_mov_b32 v{v}, v{t}")
    a.e("s_nop 1")
    a.e(f"v_mov_b32_dpp v{v}, v{t} row_newbcast:0 row_mask:0xf bank_mask:0xf")

def ln_stats(a, xs, n, vm, vs, vr, t0, t1):
    a.e(f"v_add_f32 v{t0}, v{xs[0]}, v{xs[1]}")
    for x in xs[2:]:
        a.e(f"v_add_f32 v{t0}, v{t0}, v{x}")
    allreduce16(a, t0, t1)
    import struct
    inv = struct.unpack('<I', struct.pack('<f', 1.0/n))[0]
    a.e(f"v_mul_f32 v{vm}, {hex(inv)}, v{t0}")
    a.e(f"v_mov_b32 v{t0}, 0")
    for x in xs:
        a.e(f"v_sub_f32 v{t1}, v{x}, v{vm}")
        a.e(f"v_fmac_f32 v{t0}, v{t1}, v{t1}")
    allreduce16(a, t0, t1)
    a.e(f"v_mul_f32 v{vs}, {hex(inv)}, v{t0}")
    rnd(a, vm)
    rnd(a, vs)
    a.e(f"v_add_f32 v{vs}, 0x3727c5ac, v{vs}")
    rnd(a, vs)
    a.e(f"v_sqrt_f32 v{vs}, v{vs}")
    a.e("s_nop 0")
    rnd(a, vs)
    a.e(f"v_rcp_f32 v{vr}, v{vs}")
    a.e("s_nop 0")

def div_pair(a, d0, d1, vs, vr, t0, t1):
    for d, t in ((d0, t0), (d1, t1)):
        a.e(f"v_mul_f32 v{t}, v{d}, v{vr}")
    for d, t in ((d0, t0), (d1, t1)):
        a.e(f"v_fma_f32 v{d}, -v{t}, v{vs}, v{d}")
    for d, t in ((d0, t0), (d1, t1)):
        a.e(f"v_fma_f32 v{d}, v{d}, v{vr}, v{t}")

def load_modvec(a, vec, dst, voff):
    a.e(f"s_mov_b32 s17, {vec*1792}")
    for i in range(7):
        a.e(f"buffer_load_dwordx4 v[{dst+4*i}:{dst+4*i+3}], v{voff}, s[24:27], s17 offen offset:{16*i}")

def gen_k2(a):
    name = "mid_kernel"
    kernel_header(a, name)
    L_end = a.newlabel("K2_end")
    a.e("s_cmp_ge_u32 s2, 256")
    a.e(f"s_cbranch_scc1 {L_end}")
    load_ptr(a, 4, P_Q); load_ptr(a, 8, P_WS)
    a.e("s_waitcnt lgkmcnt(0)")
    make_srd(a, 20, 4, 0, S*D*2)
    make_srd(a, 24, 8, WS_MOD, 2688*4)
    make_srd(a, 28, 8, WS_UT, D*S*2)
    make_srd(a, 32, 8, WS_X1, S*D*2)
    make_srd(a, 36, 8, WS_WINT, F*D*2)
    make_srd(a, 40, 8, WS_Z1, S*FH*2)
    make_srd(a, 44, 8, WS_Z2T, FH*S*2)
    a.e("s_lshr_b32 s10, s2, 1")
    a.e("s_and_b32 s11, s2, 1")
    a.e("s_lshl_b32 s12, s10, 4")
    a.e("s_lshl_b32 s13, s12, 1")
    for it in range(4):
        Lskip = a.newlabel("K2_sk")
        if it == 3:
            a.e("v_cmp_gt_u32 vcc, 128, v0")
            a.e("s_and_saveexec_b64 s[50:51], vcc")
            a.e(f"s_cbranch_execz {Lskip}")
        a.e(f"v_add_u32 v3, {256*it}, v0")
        a.e("v_lshrrev_b32 v4, 1, v3")
        a.e("v_and_b32 v5, 1, v3")
        a.e("v_lshlrev_b32 v6, 12, v4")
        a.e("v_lshlrev_b32 v7, 4, v5")
        a.e("v_add_u32 v6, v6, v7")
        a.e("v_add_u32 v6, s13, v6")
        a.e("buffer_load_dwordx4 v[8:11], v6, s[28:31], 0 offen")
        a.e(f"v_mul_u32_u24 v7, {8*US}, v5")
        a.e("v_lshlrev_b32 v6, 1, v4")
        a.e("v_add_u32 v7, v7, v6")
        a.e("s_waitcnt vmcnt(0)")
        for i in range(8):
            src = 8 + i//2
            if i % 2 == 0:
                a.e(f"ds_write_b16 v7, v{src} offset:{L_U + i*US}")
            else:
                a.e(f"ds_write_b16_d16_hi v7, v{src} offset:{L_U + i*US}")
        if it == 3:
            a.label(Lskip)
            a.e("s_or_b64 exec, exec, s[50:51]")
    a.e("v_lshrrev_b32 v1, 4, v0")
    a.e("v_and_b32 v2, 15, v0")
    a.e("v_add_u32 v3, s12, v1")
    a.e("v_mul_u32_u24 v3, 896, v3")
    a.e("v_mul_u32_u24 v4, 56, v2")
    a.e("v_add_u32 v3, v3, v4")
    for i in range(7):
        a.e(f"buffer_load_dwordx2 v[{32+2*i}:{33+2*i}], v3, s[20:23], 0 offen offset:{8*i}")
    a.e("v_mul_u32_u24 v5, 112, v2")
    load_modvec(a, 1, 96, 5)
    load_modvec(a, 0, 124, 5)
    a.e("s_waitcnt vmcnt(14)")
    xs = list(range(64, 92))
    for i in range(14):
        a.e(f"v_lshlrev_b32 v{64+2*i}, 16, v{32+i}")
        a.e(f"v_and_b32 v{65+2*i}, 0xffff0000, v{32+i}")
    ln_stats(a, xs, D, 12, 13, 14, 15, 16)
    a.e("s_waitcnt vmcnt(0) lgkmcnt(0)")
    a.e("s_barrier")
    a.e(f"v_mul_u32_u24 v6, {US}, v1")
    a.e("v_add_u32 v6, v6, v4")
    for i in range(7):
        a.e(f"ds_read_b64 v[{46+2*i}:{47+2*i}], v6 offset:{L_U + 8*i}")
    for j in range(14):
        x0, x1_ = 64+2*j, 65+2*j
        a.e(f"v_sub_f32 v16, v{x0}, v12")
        a.e(f"v_sub_f32 v17, v{x1_}, v12")
        rnd2(a, 16, 17, 18)
        div_pair(a, 16, 17, 13, 14, 18, 19)
        rnd2(a, 16, 17, 18)
        a.e(f"v_add_f32 v18, 1.0, v{96+2*j}")
        a.e(f"v_add_f32 v19, 1.0, v{97+2*j}")
        rnd2(a, 18, 19, 20)
        a.e("v_mul_f32 v16, v16, v18")
        a.e("v_mul_f32 v17, v17, v19")
        rnd2(a, 16, 17, 18)
        a.e(f"v_add_f32 v16, v16, v{124+2*j}")
        a.e(f"v_add_f32 v17, v17, v{125+2*j}")
        rnd2(a, 16, 17, 18)
        a.e(f"v_mov_b32 v{152+2*j}, v16")
        a.e(f"v_mov_b32 v{153+2*j}, v17")
    load_modvec(a, 2, 96, 5)
    a.e("s_waitcnt vmcnt(0) lgkmcnt(0)")
    for j in range(14):
        a.e(f"v_lshlrev_b32 v18, 16, v{46+j}")
        a.e(f"v_and_b32 v19, 0xffff0000, v{46+j}")
        a.e(f"v_mul_f32 v16, v{152+2*j}, v18")
        a.e(f"v_mul_f32 v17, v{153+2*j}, v19")
        rnd2(a, 16, 17, 18)
        a.e(f"v_mul_f32 v16, v16, v{96+2*j}")
        a.e(f"v_mul_f32 v17, v17, v{97+2*j}")
        rnd2(a, 16, 17, 18)
        a.e(f"v_add_f32 v16, v16, v{64+2*j}")
        a.e(f"v_add_f32 v17, v17, v{65+2*j}")
        a.e(f"v_cvt_pk_bf16_f32 v{32+j}, v16, v17")
        a.e(f"v_lshlrev_b32 v{64+2*j}, 16, v{32+j}")
        a.e(f"v_and_b32 v{65+2*j}, 0xffff0000, v{32+j}")
    Lns = a.newlabel("K2_nostore")
    a.e("s_cmp_lg_u32 s11, 0")
    a.e(f"s_cbranch_scc1 {Lns}")
    for i in range(7):
        a.e(f"buffer_store_dwordx2 v[{32+2*i}:{33+2*i}], v3, s[32:35], 0 offen offset:{8*i}")
    a.label(Lns)
    load_modvec(a, 4, 96, 5)
    load_modvec(a, 3, 124, 5)
    ln_stats(a, xs, D, 12, 13, 14, 15, 16)
    a.e("s_waitcnt vmcnt(0)")
    for j in range(14):
        x0, x1_ = 64+2*j, 65+2*j
        a.e(f"v_sub_f32 v16, v{x0}, v12")
        a.e(f"v_sub_f32 v17, v{x1_}, v12")
        rnd2(a, 16, 17, 18)
        div_pair(a, 16, 17, 13, 14, 18, 19)
        rnd2(a, 16, 17, 18)
        a.e(f"v_add_f32 v18, 1.0, v{96+2*j}")
        a.e(f"v_add_f32 v19, 1.0, v{97+2*j}")
        rnd2(a, 18, 19, 20)
        a.e("v_mul_f32 v16, v16, v18")
        a.e("v_mul_f32 v17, v17, v19")
        rnd2(a, 16, 17, 18)
        a.e(f"v_add_f32 v16, v16, v{124+2*j}")
        a.e(f"v_add_f32 v17, v17, v{125+2*j}")
        a.e(f"v_cvt_pk_bf16_f32 v{46+j}, v16, v17")
    a.e(f"v_mul_u32_u24 v6, {HS}, v1")
    a.e("v_add_u32 v6, v6, v4")
    for i in range(7):
        a.e(f"ds_write_b64 v6, v[{46+2*i}:{47+2*i}] offset:{L_H2 + 8*i}")
    a.e("s_waitcnt lgkmcnt(0)")
    a.e("s_barrier")
    a.e("v_and_b32 v1, 15, v0")
    a.e("v_lshrrev_b32 v2, 4, v0")
    a.e("v_and_b32 v2, 3, v2")
    a.e("v_lshrrev_b32 v3, 6, v0")
    a.e(f"v_mul_u32_u24 v4, {HS}, v1")
    a.e("v_lshlrev_b32 v5, 4, v2")
    a.e("v_add_u32 v4, v4, v5")
    for ks in range(14):
        a.e(f"ds_read_b128 v[{32+4*ks}:{35+4*ks}], v4 offset:{L_H2 + 64*ks}")
    a.e("v_mul_u32_u24 v6, 224, v3")
    a.e("v_add_u32 v6, v6, v1")
    a.e("s_mul_i32 s13, s11, 896")
    a.e("v_add_u32 v6, s13, v6")
    a.e("v_mul_u32_u24 v6, 896, v6")
    a.e("v_add_u32 v6, v6, v5")
    def wload(buf, nt):
        base = 88 + 56*buf
        for ks in range(14):
            a.e(f"buffer_load_dwordx4 v[{base+4*ks}:{base+4*ks+3}], v7, s[36:39], 0 offen offset:{64*ks}")
    def gemm(half):
        a.e("v_mov_b32 v7, v6")
        wload(0, 0)
        for nt in range(14):
            buf = nt & 1
            base = 88 + 56*buf
            if nt < 13:
                a.e("v_add_u32 v7, 14336, v7")
                wload(buf ^ 1, nt+1)
            for r in range(4):
                a.e(f"v_mov_b32 v{228+r}, 0")
            a.e("s_nop 1")
            for ks in range(14):
                if ks == 0:
                    a.e(f"s_waitcnt vmcnt({14 if nt < 13 else 0}) lgkmcnt(0)")
                hf = f"v[{32+4*ks}:{35+4*ks}]"; wf = f"v[{base+4*ks}:{base+4*ks+3}]"
                if half == 1:
                    a.e(f"v_mfma_f32_16x16x32_bf16 v[228:231], {hf}, {wf}, v[228:231]")
                else:
                    a.e(f"v_mfma_f32_16x16x32_bf16 v[228:231], {wf}, {hf}, v[228:231]")
            a.e("s_nop 7")
            a.e("s_nop 1")
            rnd2(a, 228, 229, 232)
            rnd2(a, 230, 231, 232)
            for r in range(4):
                x = 228 + r; t = 233 + r
                a.e(f"v_mul_f32 v{t}, v{x}, v{x}")
                a.e(f"v_fma_f32 v{t}, v{t}, s14, v254")
                a.e(f"v_mul_f32 v{t}, v{t}, v{x}")
                a.e(f"v_exp_f32 v{t}, v{t}")
            a.e("s_nop 0")
            for r in range(4):
                t = 233 + r
                a.e(f"v_add_f32 v{t}, 1.0, v{t}")
                a.e(f"v_rcp_f32 v{t}, v{t}")
            a.e("s_nop 0")
            for r in range(4):
                a.e(f"v_mul_f32 v{228+r}, v{228+r}, v{233+r}")
            a.e(f"v_cvt_pk_bf16_f32 v{200+2*nt}, v228, v229")
            a.e(f"v_cvt_pk_bf16_f32 v{201+2*nt}, v230, v231")
            if half == 0:
                a.e(f"buffer_store_dwordx2 v[{200+2*nt}:{201+2*nt}], v8, s[40:43], 0 offen offset:{32*nt}")
    import struct
    def f2h(x): return hex(struct.unpack('<I', struct.pack('<f', x))[0])
    c = -2.0*0.7978845608028654*1.4426950408889634
    a.e(f"s_mov_b32 s14, {f2h(0.044715*c)}")
    a.e(f"v_mov_b32 v254, {f2h(c)}")
    L_h1 = a.newlabel("K2_half1")
    a.e("s_cmp_eq_u32 s11, 1")
    a.e(f"s_cbranch_scc1 {L_h1}")
    a.e("v_add_u32 v8, s12, v1")
    a.e("v_mul_u32_u24 v8, 1792, v8")
    a.e("v_mul_u32_u24 v9, 448, v3")
    a.e("v_add_u32 v8, v8, v9")
    a.e("v_lshlrev_b32 v9, 3, v2")
    a.e("v_add_u32 v8, v8, v9")
    gemm(0)
    a.e(f"s_branch {L_end}")
    a.label(L_h1)
    gemm(1)
    def red_pass(area, regs):
        for r in range(4):
            allreduce16(a, regs[r], 236)
        a.e("v_lshlrev_b32 v9, 6, v3")
        a.e("v_lshlrev_b32 v10, 4, v2")
        a.e("v_add_u32 v9, v9, v10")
        a.e("v_cmp_eq_u32 vcc, 0, v1")
        a.e("s_and_saveexec_b64 s[50:51], vcc")
        a.e(f"ds_write_b128 v9, v[{regs[0]}:{regs[3]}] offset:{area}")
        a.e("s_or_b64 exec, exec, s[50:51]")
        a.e("s_waitcnt lgkmcnt(0)")
        a.e("s_barrier")
        for w in range(4):
            a.e(f"ds_read_b128 v[{240+4*w}:{243+4*w}], v10 offset:{area + 64*w}")
        a.e("s_waitcnt lgkmcnt(0)")
        for r in range(4):
            a.e(f"v_add_f32 v{regs[r]}, v{240+r}, v{244+r}")
            a.e(f"v_add_f32 v{regs[r]}, v{regs[r]}, v{248+r}")
            a.e(f"v_add_f32 v{regs[r]}, v{regs[r]}, v{252+r}")
    for nt in range(14):
        a.e(f"v_lshlrev_b32 v{88+4*nt}, 16, v{200+2*nt}")
        a.e(f"v_and_b32 v{89+4*nt}, 0xffff0000, v{200+2*nt}")
        a.e(f"v_lshlrev_b32 v{90+4*nt}, 16, v{201+2*nt}")
        a.e(f"v_and_b32 v{91+4*nt}, 0xffff0000, v{201+2*nt}")
    sums = [228, 229, 230, 231]
    for r in range(4):
        a.e(f"v_mov_b32 v{sums[r]}, v{88+r}")
        for nt in range(1, 14):
            a.e(f"v_add_f32 v{sums[r]}, v{sums[r]}, v{88+4*nt+r}")
    red_pass(L_RED, sums)
    means = [144, 145, 146, 147]
    for r in range(4):
        a.e(f"v_mul_f32 v{means[r]}, {f2h(1.0/896)}, v{sums[r]}")
        a.e(f"v_mov_b32 v{sums[r]}, 0")
        for nt in range(14):
            a.e(f"v_sub_f32 v236, v{88+4*nt+r}, v{means[r]}")
            a.e(f"v_fmac_f32 v{sums[r]}, v236, v236")
    red_pass(L_RED + 256, sums)
    sq = [148, 149, 150, 151]; rc = [152, 153, 154, 155]
    for r in range(4):
        a.e(f"v_mul_f32 v{sq[r]}, {f2h(1.0/896)}, v{sums[r]}")
        rnd(a, means[r])
        rnd(a, sq[r])
        a.e(f"v_add_f32 v{sq[r]}, 0x3727c5ac, v{sq[r]}")
        rnd(a, sq[r])
        a.e(f"v_sqrt_f32 v{sq[r]}, v{sq[r]}")
        a.e("s_nop 0")
        rnd(a, sq[r])
        a.e(f"v_rcp_f32 v{rc[r]}, v{sq[r]}")
    a.e("s_nop 0")
    a.e("v_mul_u32_u24 v8, 224, v3")
    a.e("v_add_u32 v8, v8, v1")
    a.e("v_lshlrev_b32 v8, 12, v8")
    a.e("v_lshlrev_b32 v9, 3, v2")
    a.e("v_add_u32 v8, v8, v9")
    a.e("v_add_u32 v8, s13, v8")
    a.e("v_subrev_u32 v8, s13, v8")
    a.e("s_lshl_b32 s16, s12, 1")
    a.e("v_add_u32 v8, s16, v8")
    for nt in range(14):
        z = [88+4*nt+r for r in range(4)]
        for r in range(4):
            a.e(f"v_sub_f32 v{z[r]}, v{z[r]}, v{means[r]}")
        rnd2(a, z[0], z[1], 236)
        rnd2(a, z[2], z[3], 236)
        for r in range(4):
            a.e(f"v_mul_f32 v{232+r}, v{z[r]}, v{rc[r]}")
        for r in range(4):
            a.e(f"v_fma_f32 v{z[r]}, -v{232+r}, v{sq[r]}, v{z[r]}")
        for r in range(4):
            a.e(f"v_fma_f32 v{z[r]}, v{z[r]}, v{rc[r]}, v{232+r}")
        a.e(f"v_cvt_pk_bf16_f32 v236, v{z[0]}, v{z[1]}")
        a.e(f"v_cvt_pk_bf16_f32 v237, v{z[2]}, v{z[3]}")
        a.e("buffer_store_dwordx2 v[236:237], v8, s[44:47], 0 offen")
        if nt < 13:
            a.e("v_add_u32 v8, 65536, v8")
        a.e("s_nop 0")
    a.label(L_end)
    a.e("s_endpgm")
    return name, 256, 256, LDS_BYTES, 256
```

```python
from common import *

def gemm_core(a, tag, BM, BN, WM, WN, K, ldP, ldQ, sP, sQ, acc0):
    MT, NT = BM//WM//16, BN//WN//16
    nP, nQ = BM//32, BN//32
    stg = 32
    fragP = stg + 4*(nP+nQ)
    fragQ = fragP + 8*MT
    assert fragQ + 8*NT <= acc0
    SZ = (BM+BN)*128
    a.e("v_lshrrev_b32 v1, 3, v0")
    a.e("v_and_b32 v2, 7, v0")
    a.e(f"v_mul_u32_u24 v3, {ldP}, v1")
    a.e("v_lshlrev_b32 v4, 4, v2")
    a.e("v_add_u32 v3, v3, v4")
    a.e(f"v_mul_u32_u24 v5, {ldQ}, v1")
    a.e("v_add_u32 v5, v5, v4")
    a.e("v_xor_b32 v6, v2, v1")
    a.e("v_and_b32 v6, 7, v6")
    a.e("v_lshlrev_b32 v6, 4, v6")
    a.e("v_lshlrev_b32 v7, 7, v1")
    a.e("v_add_u32 v6, v6, v7")
    a.e("v_and_b32 v8, 15, v0")
    a.e("v_lshrrev_b32 v9, 4, v0")
    a.e("v_and_b32 v9, 3, v9")
    a.e("v_lshrrev_b32 v10, 6, v0")
    if WN == 2:
        a.e("v_lshrrev_b32 v11, 1, v10")
        a.e("v_and_b32 v12, 1, v10")
    else:
        a.e("v_mov_b32 v11, v10"); a.e("v_mov_b32 v12, 0")
    a.e("v_and_b32 v13, 7, v8")
    a.e("v_xor_b32 v13, v13, v9")
    a.e("v_lshlrev_b32 v13, 4, v13")
    a.e(f"v_mul_u32_u24 v14, {(BM//WM)*128}, v11")
    a.e("v_lshlrev_b32 v15, 7, v8")
    a.e("v_add_u32 v14, v14, v15")
    a.e("v_add_u32 v14, v14, v13")
    a.e("v_xor_b32 v16, 64, v14")
    a.e(f"v_mul_u32_u24 v17, {(BN//WN)*128}, v12")
    a.e("v_add_u32 v17, v17, v15")
    a.e("v_add_u32 v17, v17, v13")
    a.e(f"v_add_u32 v17, {BM*128}, v17")
    a.e("v_xor_b32 v18, 64, v17")
    for i in range(MT*NT*4):
        a.e(f"v_mov_b32 v{acc0+i}, 0")
    def gload():
        for it in range(nP):
            a.e(f"buffer_load_dwordx4 v[{stg+4*it}:{stg+4*it+3}], v3, s[{sP}:{sP+3}], s60 offen")
            if it < nP-1: a.e(f"v_add_u32 v3, {32*ldP}, v3")
        a.e(f"v_subrev_u32 v3, {32*ldP*(nP-1)}, v3")
        for it in range(nQ):
            r = stg + 4*(nP+it)
            a.e(f"buffer_load_dwordx4 v[{r}:{r+3}], v5, s[{sQ}:{sQ+3}], s61 offen")
            if it < nQ-1: a.e(f"v_add_u32 v5, {32*ldQ}, v5")
        if nQ > 1: a.e(f"v_subrev_u32 v5, {32*ldQ*(nQ-1)}, v5")
        a.e("s_add_u32 s60, s60, 128")
        a.e("s_add_u32 s61, s61, 128")
    def lwrite(buf):
        for it in range(nP):
            a.e(f"ds_write_b128 v6, v[{stg+4*it}:{stg+4*it+3}] offset:{buf*SZ + it*4096}")
        for it in range(nQ):
            r = stg + 4*(nP+it)
            a.e(f"ds_write_b128 v6, v[{r}:{r+3}] offset:{buf*SZ + BM*128 + it*4096}")
    def compute(buf):
        for ks in range(2):
            for mi in range(MT):
                r = fragP + 4*(ks*MT+mi)
                a.e(f"ds_read_b128 v[{r}:{r+3}], v{14 if ks == 0 else 16} offset:{buf*SZ + mi*2048}")
            for ni in range(NT):
                r = fragQ + 4*(ks*NT+ni)
                a.e(f"ds_read_b128 v[{r}:{r+3}], v{17 if ks == 0 else 18} offset:{buf*SZ + ni*2048}")
        for ks in range(2):
            a.e(f"s_waitcnt lgkmcnt({(MT+NT) if ks == 0 else 0})")
            for mi in range(MT):
                for ni in range(NT):
                    c = acc0 + 4*(mi*NT+ni)
                    p = fragP + 4*(ks*MT+mi); q = fragQ + 4*(ks*NT+ni)
                    a.e(f"v_mfma_f32_16x16x32_bf16 v[{c}:{c+3}], v[{p}:{p+3}], v[{q}:{q+3}], v[{c}:{c+3}]")
    nst = K // 64
    assert nst % 2 == 0
    gload()
    a.e("s_waitcnt vmcnt(0)")
    lwrite(0)
    a.e("s_waitcnt lgkmcnt(0)")
    a.e("s_barrier")
    a.e(f"s_mov_b32 s62, {nst//2}")
    Lp = a.newlabel(tag + "_loop")
    a.label(Lp)
    for buf in range(2):
        Lskip = a.newlabel(tag + "_nl")
        if buf == 1:
            a.e("s_cmp_eq_u32 s62, 1")
            a.e(f"s_cbranch_scc1 {Lskip}")
        gload()
        if buf == 1:
            a.label(Lskip)
        compute(buf)
        Lskip2 = a.newlabel(tag + "_nw")
        if buf == 1:
            a.e("s_cmp_eq_u32 s62, 1")
            a.e(f"s_cbranch_scc1 {Lskip2}")
        a.e("s_waitcnt vmcnt(0)")
        lwrite(buf ^ 1)
        if buf == 1:
            a.label(Lskip2)
        a.e("s_waitcnt lgkmcnt(0)")
        a.e("s_barrier")
    a.e("s_sub_u32 s62, s62, 1")
    a.e("s_cmp_lg_u32 s62, 0")
    a.e(f"s_cbranch_scc1 {Lp}")
    a.e("s_nop 7")
    a.e("s_nop 1")
    return MT, NT, 2*SZ

def unpk(a, src, lo, hi):
    a.e(f"v_lshlrev_b32 v{lo}, 16, v{src}")
    a.e(f"v_and_b32 v{hi}, 0xffff0000, v{src}")

def gen_k3(a):
    name = "spat_kernel"
    kernel_header(a, name)
    L_end = a.newlabel("K3_end")
    a.e("s_cmp_ge_u32 s2, 224")
    a.e(f"s_cbranch_scc1 {L_end}")
    load_ptr(a, 4, P_WSP); load_ptr(a, 6, P_BSP); load_ptr(a, 8, P_WS)
    a.e("s_waitcnt lgkmcnt(0)")
    make_srd(a, 20, 8, WS_Z2T, FH*S*2)
    make_srd(a, 24, 4, 0, S*S*2)
    make_srd(a, 28, 6, 0, S*2)
    make_srd(a, 32, 8, WS_Z1, S*FH*2)
    make_srd(a, 36, 8, WS_M, S*FH*2)
    a.e("s_mul_hi_u32 s10, s2, 0x24924925")
    a.e("s_mul_i32 s11, s10, 7")
    a.e("s_sub_u32 s11, s2, s11")
    a.e("s_mul_i32 s60, s11, 524288")
    a.e("s_mul_i32 s61, s10, 262144")
    acc0 = 128
    MT, NT, lds = gemm_core(a, "K3", 128, 64, 2, 2, S, 4096, 4096, 20, 24, acc0)
    a.e("s_lshl_b32 s12, s10, 6")
    a.e("v_lshlrev_b32 v20, 5, v12")
    a.e("v_add_u32 v20, v20, v8")
    a.e("v_add_u32 v20, s12, v20")
    a.e("v_lshlrev_b32 v21, 1, v20")
    a.e("v_mul_u32_u24 v22, 1792, v20")
    a.e("s_lshl_b32 s13, s11, 8")
    a.e("v_lshlrev_b32 v23, 7, v11")
    a.e("v_lshlrev_b32 v24, 3, v9")
    a.e("v_add_u32 v23, v23, v24")
    a.e("v_add_u32 v22, v22, v23")
    a.e("v_add_u32 v22, s13, v22")
    for ni in range(NT):
        a.e(f"buffer_load_ushort v{26+ni}, v21, s[28:31], 0 offen offset:{32*ni}")
    for ni in range(NT):
        for mi in range(MT):
            r = 64 + 2*(ni*MT+mi)
            a.e(f"v_add_u32 v25, {ni*16*1792}, v22")
            a.e(f"buffer_load_dwordx2 v[{r}:{r+1}], v25, s[32:35], 0 offen offset:{32*mi}")
    a.e("s_waitcnt vmcnt(0)")
    for ni in range(NT):
        a.e(f"v_lshlrev_b32 v{26+ni}, 16, v{26+ni}")
    for ni in range(NT):
        for mi in range(MT):
            c = acc0 + 4*(mi*NT+ni)
            z = 64 + 2*(ni*MT+mi)
            for h in range(2):
                a.e(f"v_cvt_pk_bf16_f32 v28, v{c+2*h}, v{c+2*h+1}")
                unpk(a, 28, 29, 30)
                a.e(f"v_add_f32 v29, v29, v{26+ni}")
                a.e(f"v_add_f32 v30, v30, v{26+ni}")
                a.e("v_cvt_pk_bf16_f32 v28, v29, v30")
                unpk(a, 28, 29, 30)
                unpk(a, z+h, 31, 28)
                a.e("v_mul_f32 v29, v29, v31")
                a.e("v_mul_f32 v30, v30, v28")
                a.e(f"v_cvt_pk_bf16_f32 v{z+h}, v29, v30")
            a.e(f"v_add_u32 v25, {ni*16*1792}, v22")
            a.e(f"buffer_store_dwordx2 v[{z}:{z+1}], v25, s[36:39], 0 offen offset:{32*mi}")
    a.label(L_end)
    a.e("s_endpgm")
    return name, 224, 256, lds, 168

def gen_k4(a):
    name = "outp_kernel"
    kernel_header(a, name)
    L_end = a.newlabel("K4_end")
    a.e("s_cmp_ge_u32 s2, 224")
    a.e(f"s_cbranch_scc1 {L_end}")
    load_ptr(a, 4, P_OUT); load_ptr(a, 8, P_WS)
    a.e("s_waitcnt lgkmcnt(0)")
    make_srd(a, 20, 8, WS_WOUTT, D*FH*2)
    make_srd(a, 24, 8, WS_M, S*FH*2)
    make_srd(a, 28, 8, WS_MOD, 2688*4)
    make_srd(a, 32, 8, WS_X1, S*D*2)
    make_srd(a, 36, 4, 0, S*D*2)
    a.e("s_mul_hi_u32 s10, s2, 0x24924925")
    a.e("s_mul_i32 s11, s10, 7")
    a.e("s_sub_u32 s11, s2, s11")
    a.e("s_mul_i32 s60, s11, 114688")
    a.e("s_mul_i32 s61, s10, 114688")
    acc0 = 128
    MT, NT, lds = gemm_core(a, "K4", 64, 64, 2, 2, FH, 1792, 1792, 20, 24, acc0)
    a.e("s_lshl_b32 s12, s10, 6")
    a.e("v_lshlrev_b32 v20, 5, v12")
    a.e("v_add_u32 v20, v20, v8")
    a.e("v_add_u32 v20, s12, v20")
    a.e("v_mul_u32_u24 v22, 896, v20")
    a.e("s_lshl_b32 s13, s11, 7")
    a.e("v_lshlrev_b32 v23, 6, v11")
    a.e("v_lshlrev_b32 v24, 3, v9")
    a.e("v_add_u32 v23, v23, v24")
    a.e("v_add_u32 v23, s13, v23")
    a.e("v_add_u32 v22, v22, v23")
    a.e("v_lshlrev_b32 v24, 1, v23")
    a.e("s_mov_b32 s17, 8960")
    for mi in range(MT):
        a.e(f"buffer_load_dwordx4 v[{80+4*mi}:{83+4*mi}], v24, s[28:31], s17 offen offset:{64*mi}")
    for ni in range(NT):
        for mi in range(MT):
            r = 64 + 2*(ni*MT+mi)
            a.e(f"v_add_u32 v25, {ni*16*896}, v22")
            a.e(f"buffer_load_dwordx2 v[{r}:{r+1}], v25, s[32:35], 0 offen offset:{32*mi}")
    a.e("s_waitcnt vmcnt(0)")
    for ni in range(NT):
        for mi in range(MT):
            c = acc0 + 4*(mi*NT+ni)
            z = 64 + 2*(ni*MT+mi)
            for h in range(2):
                a.e(f"v_cvt_pk_bf16_f32 v28, v{c+2*h}, v{c+2*h+1}")
                unpk(a, 28, 29, 30)
                a.e(f"v_mul_f32 v29, v29, v{80+4*mi+2*h}")
                a.e(f"v_mul_f32 v30, v30, v{81+4*mi+2*h}")
                a.e("v_cvt_pk_bf16_f32 v28, v29, v30")
                unpk(a, 28, 29, 30)
                unpk(a, z+h, 31, 28)
                a.e("v_add_f32 v29, v29, v31")
                a.e("v_add_f32 v30, v30, v28")
                a.e(f"v_cvt_pk_bf16_f32 v{z+h}, v29, v30")
            a.e(f"v_add_u32 v25, {ni*16*896}, v22")
            a.e(f"buffer_store_dwordx2 v[{z}:{z+1}], v25, s[36:39], 0 offen offset:{32*mi}")
    a.label(L_end)
    a.e("s_endpgm")
    return name, 224, 256, lds, 168
```

```python
import sys
sys.path.insert(0, "gen")
from common import *
import k0
HEADER = open("adaLN_cond__ssm_conv_h3__mixer_gmlp__prompt.s.ref").read().split("; Override launch")[0]
def main():
    a = Asm()
    kernels = []
    gens = [k0.gen_k0]
    try:
        import k1; gens.append(k1.gen_k1)
    except ImportError: pass
    try:
        import k2; gens.append(k2.gen_k2)
    except ImportError: pass
    try:
        import k3; gens.append(k3.gen_k3); gens.append(k3.gen_k4)
    except ImportError: pass
    for g in gens:
        kernels.append(g(a))
    out = HEADER
    for k in kernels:
        out += f"; @launch kernel={k[0]} grid=({k[1]},1,1) block=({k[2]},1,1) lds={k[3]}\n"
    out += '.amdgcn_target "amdgcn-amd-amdhsa--gfx950"\n.text\n' + a.text()
    out += '.section .rodata,"a"\n'
    for k in kernels:
        out += kernel_desc(k[0], k[4] + (k[5] if len(k) > 5 else 0), accum=(k[4] + 3)//4*4)
    open("adaLN_cond__ssm_conv_h3__mixer_gmlp__prompt.s", "w").write(out)
main()
```

```python
from common import *
US = 904
HS = 912
L_U = 0
L_H2 = 14848
L_RED = L_H2 + 16*HS + 64
LDS_BYTES = L_RED + 512

def rnd(a, v):
    a.e(f"v_cvt_pk_bf16_f32 v{v}, v{v}, v{v}")
    a.e(f"v_lshlrev_b32 v{v}, 16, v{v}")

def rnd2(a, lo, hi, tmp):
    a.e(f"v_cvt_pk_bf16_f32 v{tmp}, v{lo}, v{hi}")
    a.e(f"v_lshlrev_b32 v{lo}, 16, v{tmp}")
    a.e(f"v_and_b32 v{hi}, 0xffff0000, v{tmp}")

def allreduce16(a, v, t):
    for sh in (8, 4, 2, 1):
        a.e("s_nop 1")
        a.e(f"v_add_f32_dpp v{t}, v{v}, v{v} row_ror:{sh} row_mask:0xf bank_mask:0xf")
        a.e(f"v_mov_b32 v{v}, v{t}")
    a.e("s_nop 1")
    a.e(f"v_mov_b32_dpp v{v}, v{t} row_newbcast:0 row_mask:0xf bank_mask:0xf")

def ln_stats(a, xs, n, vm, vs, vr, t0, t1):
    a.e(f"v_add_f32 v{t0}, v{xs[0]}, v{xs[1]}")
    for x in xs[2:]:
        a.e(f"v_add_f32 v{t0}, v{t0}, v{x}")
    allreduce16(a, t0, t1)
    import struct
    inv = struct.unpack('<I', struct.pack('<f', 1.0/n))[0]
    a.e(f"v_mul_f32 v{vm}, {hex(inv)}, v{t0}")
    a.e(f"v_mov_b32 v{t0}, 0")
    for x in xs:
        a.e(f"v_sub_f32 v{t1}, v{x}, v{vm}")
        a.e(f"v_fmac_f32 v{t0}, v{t1}, v{t1}")
    allreduce16(a, t0, t1)
    a.e(f"v_mul_f32 v{vs}, {hex(inv)}, v{t0}")
    rnd(a, vm)
    rnd(a, vs)
    a.e(f"v_add_f32 v{vs}, 0x3727c5ac, v{vs}")
    rnd(a, vs)
    a.e(f"v_sqrt_f32 v{vs}, v{vs}")
    a.e("s_nop 0")
    rnd(a, vs)
    a.e(f"v_rcp_f32 v{vr}, v{vs}")
    a.e("s_nop 0")

def div_pair(a, d0, d1, vs, vr, t0, t1):
    for d, t in ((d0, t0), (d1, t1)):
        a.e(f"v_mul_f32 v{t}, v{d}, v{vr}")
    for d, t in ((d0, t0), (d1, t1)):
        a.e(f"v_fma_f32 v{d}, -v{t}, v{vs}, v{d}")
    for d, t in ((d0, t0), (d1, t1)):
        a.e(f"v_fma_f32 v{d}, v{d}, v{vr}, v{t}")

def load_modvec(a, vec, dst, voff):
    a.e(f"s_mov_b32 s17, {vec*1792}")
    for i in range(7):
        a.e(f"buffer_load_dwordx4 v[{dst+4*i}:{dst+4*i+3}], v{voff}, s[24:27], s17 offen offset:{16*i}")

def gen_k2(a):
    name = "mid_kernel"
    kernel_header(a, name)
    L_end = a.newlabel("K2_end")
    a.e("s_cmp_ge_u32 s2, 256")
    a.e(f"s_cbranch_scc1 {L_end}")
    load_ptr(a, 4, P_Q); load_ptr(a, 8, P_WS)
    a.e("s_waitcnt lgkmcnt(0)")
    make_srd(a, 20, 4, 0, S*D*2)
    make_srd(a, 24, 8, WS_MOD, 2688*4)
    make_srd(a, 28, 8, WS_UT, D*S*2)
    make_srd(a, 32, 8, WS_X1, S*D*2)
    make_srd(a, 36, 8, WS_WINT, F*D*2)
    make_srd(a, 40, 8, WS_Z1, S*FH*2)
    make_srd(a, 44, 8, WS_Z2T, FH*S*2)
    a.e("s_lshr_b32 s10, s2, 1")
    a.e("s_and_b32 s11, s2, 1")
    a.e("s_lshl_b32 s12, s10, 4")
    a.e("s_lshl_b32 s13, s12, 1")
    a.e("v_lshrrev_b32 v1, 4, v0")
    a.e("v_and_b32 v2, 15, v0")
    a.e("v_add_u32 v3, s12, v1")
    a.e("v_mul_u32_u24 v3, 896, v3")
    a.e("v_mul_u32_u24 v4, 56, v2")
    a.e("v_add_u32 v3, v3, v4")
    for i in range(7):
        a.e(f"buffer_load_dwordx2 v[{32+2*i}:{33+2*i}], v3, s[20:23], 0 offen offset:{8*i}")
    a.e("v_mul_u32_u24 v5, 112, v2")
    load_modvec(a, 1, 96, 5)
    load_modvec(a, 0, 124, 5)
    for it in range(4):
        a.e(f"v_add_u32 v6, {256*it}, v0")
        a.e("v_lshrrev_b32 v7, 1, v6")
        a.e("v_and_b32 v8, 1, v6")
        a.e("v_lshlrev_b32 v7, 12, v7")
        a.e("v_lshlrev_b32 v8, 4, v8")
        a.e("v_add_u32 v7, v7, v8")
        a.e(f"buffer_load_dwordx4 v[{236+4*it}:{239+4*it}], v7, s[28:31], s13 offen")
    load_modvec(a, 2, 180, 5)
    load_modvec(a, 4, 208, 5)
    a.e("v_and_b32 v9, 15, v0")
    a.e("v_lshrrev_b32 v10, 6, v0")
    a.e("v_mul_u32_u24 v252, 224, v10")
    a.e("v_add_u32 v252, v252, v9")
    a.e("s_mul_i32 s13, s11, 896")
    a.e("v_add_u32 v252, s13, v252")
    a.e("v_mul_u32_u24 v252, 896, v252")
    a.e("v_lshrrev_b32 v9, 4, v0")
    a.e("v_and_b32 v9, 3, v9")
    a.e("v_lshlrev_b32 v9, 4, v9")
    a.e("v_add_u32 v252, v252, v9")
    def wload(nt):
        base = 56*(nt % 4)
        a.e(f"s_mov_b32 s18, {nt*14336}")
        for ks in range(14):
            a.e(f"buffer_load_dwordx4 a[{base+4*ks}:{base+4*ks+3}], v252, s[36:39], s18 offen offset:{64*ks}")
    wload(0)
    a.e("s_waitcnt vmcnt(46)")
    xs = list(range(64, 92))
    for i in range(14):
        a.e(f"v_lshlrev_b32 v{64+2*i}, 16, v{32+i}")
        a.e(f"v_and_b32 v{65+2*i}, 0xffff0000, v{32+i}")
    ln_stats(a, xs, D, 12, 13, 14, 15, 16)
    a.e("s_waitcnt vmcnt(28)")
    for it in range(4):
        Lskip = a.newlabel("K2_sk")
        if it == 3:
            a.e("v_cmp_gt_u32 vcc, 128, v0")
            a.e("s_and_saveexec_b64 s[50:51], vcc")
            a.e(f"s_cbranch_execz {Lskip}")
        a.e(f"v_add_u32 v6, {256*it}, v0")
        a.e("v_lshrrev_b32 v7, 1, v6")
        a.e("v_and_b32 v8, 1, v6")
        a.e(f"v_mul_u32_u24 v8, {8*US}, v8")
        a.e("v_lshlrev_b32 v7, 1, v7")
        a.e("v_add_u32 v7, v8, v7")
        for i in range(8):
            src = 236 + 4*it + i//2
            if i % 2 == 0:
                a.e(f"ds_write_b16 v7, v{src} offset:{L_U + i*US}")
            else:
                a.e(f"ds_write_b16_d16_hi v7, v{src} offset:{L_U + i*US}")
        if it == 3:
            a.label(Lskip)
            a.e("s_or_b64 exec, exec, s[50:51]")
    wload(1)
    a.e("s_waitcnt lgkmcnt(0)")
    a.e("s_barrier")
    a.e(f"v_mul_u32_u24 v6, {US}, v1")
    a.e("v_add_u32 v6, v6, v4")
    for i in range(7):
        a.e(f"ds_read_b64 v[{46+2*i}:{47+2*i}], v6 offset:{L_U + 8*i}")
    for j in range(14):
        x0, x1_ = 64+2*j, 65+2*j
        a.e(f"v_sub_f32 v16, v{x0}, v12")
        a.e(f"v_sub_f32 v17, v{x1_}, v12")
        rnd2(a, 16, 17, 18)
        div_pair(a, 16, 17, 13, 14, 18, 19)
        rnd2(a, 16, 17, 18)
        a.e(f"v_add_f32 v18, 1.0, v{96+2*j}")
        a.e(f"v_add_f32 v19, 1.0, v{97+2*j}")
        rnd2(a, 18, 19, 20)
        a.e("v_mul_f32 v16, v16, v18")
        a.e("v_mul_f32 v17, v17, v19")
        rnd2(a, 16, 17, 18)
        a.e(f"v_add_f32 v16, v16, v{124+2*j}")
        a.e(f"v_add_f32 v17, v17, v{125+2*j}")
        rnd2(a, 16, 17, 18)
        a.e(f"v_mov_b32 v{152+2*j}, v16")
        a.e(f"v_mov_b32 v{153+2*j}, v17")
    load_modvec(a, 3, 96, 5)
    a.e("s_waitcnt vmcnt(42) lgkmcnt(0)")
    for j in range(14):
        a.e(f"v_lshlrev_b32 v18, 16, v{46+j}")
        a.e(f"v_and_b32 v19, 0xffff0000, v{46+j}")
        a.e(f"v_mul_f32 v16, v{152+2*j}, v18")
        a.e(f"v_mul_f32 v17, v{153+2*j}, v19")
        rnd2(a, 16, 17, 18)
        a.e(f"v_mul_f32 v16, v16, v{180+2*j}")
        a.e(f"v_mul_f32 v17, v17, v{181+2*j}")
        rnd2(a, 16, 17, 18)
        a.e(f"v_add_f32 v16, v16, v{64+2*j}")
        a.e(f"v_add_f32 v17, v17, v{65+2*j}")
        a.e(f"v_cvt_pk_bf16_f32 v{32+j}, v16, v17")
        a.e(f"v_lshlrev_b32 v{64+2*j}, 16, v{32+j}")
        a.e(f"v_and_b32 v{65+2*j}, 0xffff0000, v{32+j}")
    Lns = a.newlabel("K2_nostore")
    a.e("s_cmp_lg_u32 s11, 0")
    a.e(f"s_cbranch_scc1 {Lns}")
    for i in range(7):
        a.e(f"buffer_store_dwordx2 v[{32+2*i}:{33+2*i}], v3, s[32:35], 0 offen offset:{8*i}")
    a.label(Lns)
    ln_stats(a, xs, D, 12, 13, 14, 15, 16)
    a.e("s_waitcnt vmcnt(0)")
    wload(2)
    for j in range(14):
        x0, x1_ = 64+2*j, 65+2*j
        a.e(f"v_sub_f32 v16, v{x0}, v12")
        a.e(f"v_sub_f32 v17, v{x1_}, v12")
        rnd2(a, 16, 17, 18)
        div_pair(a, 16, 17, 13, 14, 18, 19)
        rnd2(a, 16, 17, 18)
        a.e(f"v_add_f32 v18, 1.0, v{208+2*j}")
        a.e(f"v_add_f32 v19, 1.0, v{209+2*j}")
        rnd2(a, 18, 19, 20)
        a.e("v_mul_f32 v16, v16, v18")
        a.e("v_mul_f32 v17, v17, v19")
        rnd2(a, 16, 17, 18)
        a.e(f"v_add_f32 v16, v16, v{96+2*j}")
        a.e(f"v_add_f32 v17, v17, v{97+2*j}")
        a.e(f"v_cvt_pk_bf16_f32 v{46+j}, v16, v17")
    a.e(f"v_mul_u32_u24 v6, {HS}, v1")
    a.e("v_add_u32 v6, v6, v4")
    for i in range(7):
        a.e(f"ds_write_b64 v6, v[{46+2*i}:{47+2*i}] offset:{L_H2 + 8*i}")
    a.e("s_waitcnt lgkmcnt(0)")
    a.e("s_barrier")
    import os
    if os.environ.get("K2X") == "1":
        a.e(f"s_branch {L_end}")
    a.e("v_and_b32 v1, 15, v0")
    a.e("v_lshrrev_b32 v2, 4, v0")
    a.e("v_and_b32 v2, 3, v2")
    a.e("v_lshrrev_b32 v3, 6, v0")
    a.e(f"v_mul_u32_u24 v4, {HS}, v1")
    a.e("v_lshlrev_b32 v5, 4, v2")
    a.e("v_add_u32 v4, v4, v5")
    for ks in range(14):
        a.e(f"ds_read_b128 v[{32+4*ks}:{35+4*ks}], v4 offset:{L_H2 + 64*ks}")
    def gemm(half):
        for nt in range(14):
            base = 56*(nt % 4)
            if nt + 3 < 14:
                wload(nt+3)
            for r in range(4):
                a.e(f"v_mov_b32 v{228+r}, 0")
            a.e("s_nop 1")
            for ks in range(14):
                if ks == 0:
                    a.e(f"s_waitcnt vmcnt({14*min(3, 13-nt)}) lgkmcnt(0)")
                hf = f"v[{32+4*ks}:{35+4*ks}]"; wf = f"a[{base+4*ks}:{base+4*ks+3}]"
                if half == 1:
                    a.e(f"v_mfma_f32_16x16x32_bf16 v[228:231], {hf}, {wf}, v[228:231]")
                else:
                    a.e(f"v_mfma_f32_16x16x32_bf16 v[228:231], {wf}, {hf}, v[228:231]")
            a.e("s_nop 7")
            a.e("s_nop 1")
            rnd2(a, 228, 229, 232)
            rnd2(a, 230, 231, 232)
            for r in range(4):
                x = 228 + r; t = 233 + r
                a.e(f"v_mul_f32 v{t}, v{x}, v{x}")
                a.e(f"v_fma_f32 v{t}, v{t}, s14, v254")
                a.e(f"v_mul_f32 v{t}, v{t}, v{x}")
                a.e(f"v_exp_f32 v{t}, v{t}")
            a.e("s_nop 0")
            for r in range(4):
                t = 233 + r
                a.e(f"v_add_f32 v{t}, 1.0, v{t}")
                a.e(f"v_rcp_f32 v{t}, v{t}")
            a.e("s_nop 0")
            for r in range(4):
                a.e(f"v_mul_f32 v{228+r}, v{228+r}, v{233+r}")
            a.e(f"v_cvt_pk_bf16_f32 v{200+2*nt}, v228, v229")
            a.e(f"v_cvt_pk_bf16_f32 v{201+2*nt}, v230, v231")
            if half == 0:
                a.e(f"buffer_store_dwordx2 v[{200+2*nt}:{201+2*nt}], v8, s[40:43], 0 offen offset:{32*nt}")
    import struct
    def f2h(x): return hex(struct.unpack('<I', struct.pack('<f', x))[0])
    c = -2.0*0.7978845608028654*1.4426950408889634
    a.e(f"s_mov_b32 s14, {f2h(0.044715*c)}")
    a.e(f"v_mov_b32 v254, {f2h(c)}")
    L_h1 = a.newlabel("K2_half1")
    a.e("s_cmp_eq_u32 s11, 1")
    a.e(f"s_cbranch_scc1 {L_h1}")
    a.e("v_add_u32 v8, s12, v1")
    a.e("v_mul_u32_u24 v8, 1792, v8")
    a.e("v_mul_u32_u24 v9, 448, v3")
    a.e("v_add_u32 v8, v8, v9")
    a.e("v_lshlrev_b32 v9, 3, v2")
    a.e("v_add_u32 v8, v8, v9")
    gemm(0)
    a.e(f"s_branch {L_end}")
    a.label(L_h1)
    gemm(1)
    def red_pass(area, regs):
        for r in range(4):
            allreduce16(a, regs[r], 236)
        a.e("v_lshlrev_b32 v9, 6, v3")
        a.e("v_lshlrev_b32 v10, 4, v2")
        a.e("v_add_u32 v9, v9, v10")
        a.e("v_cmp_eq_u32 vcc, 0, v1")
        a.e("s_and_saveexec_b64 s[50:51], vcc")
        a.e(f"ds_write_b128 v9, v[{regs[0]}:{regs[3]}] offset:{area}")
        a.e("s_or_b64 exec, exec, s[50:51]")
        a.e("s_waitcnt lgkmcnt(0)")
        a.e("s_barrier")
        for w in range(4):
            a.e(f"ds_read_b128 v[{240+4*w}:{243+4*w}], v10 offset:{area + 64*w}")
        a.e("s_waitcnt lgkmcnt(0)")
        for r in range(4):
            a.e(f"v_add_f32 v{regs[r]}, v{240+r}, v{244+r}")
            a.e(f"v_add_f32 v{regs[r]}, v{regs[r]}, v{248+r}")
            a.e(f"v_add_f32 v{regs[r]}, v{regs[r]}, v{252+r}")
    for nt in range(14):
        a.e(f"v_lshlrev_b32 v{88+4*nt}, 16, v{200+2*nt}")
        a.e(f"v_and_b32 v{89+4*nt}, 0xffff0000, v{200+2*nt}")
        a.e(f"v_lshlrev_b32 v{90+4*nt}, 16, v{201+2*nt}")
        a.e(f"v_and_b32 v{91+4*nt}, 0xffff0000, v{201+2*nt}")
    sums = [228, 229, 230, 231]
    for r in range(4):
        a.e(f"v_mov_b32 v{sums[r]}, v{88+r}")
        for nt in range(1, 14):
            a.e(f"v_add_f32 v{sums[r]}, v{sums[r]}, v{88+4*nt+r}")
    red_pass(L_RED, sums)
    means = [144, 145, 146, 147]
    for r in range(4):
        a.e(f"v_mul_f32 v{means[r]}, {f2h(1.0/896)}, v{sums[r]}")
        a.e(f"v_mov_b32 v{sums[r]}, 0")
        for nt in range(14):
            a.e(f"v_sub_f32 v236, v{88+4*nt+r}, v{means[r]}")
            a.e(f"v_fmac_f32 v{sums[r]}, v236, v236")
    red_pass(L_RED + 256, sums)
    sq = [148, 149, 150, 151]; rc = [152, 153, 154, 155]
    for r in range(4):
        a.e(f"v_mul_f32 v{sq[r]}, {f2h(1.0/896)}, v{sums[r]}")
        rnd(a, means[r])
        rnd(a, sq[r])
        a.e(f"v_add_f32 v{sq[r]}, 0x3727c5ac, v{sq[r]}")
        rnd(a, sq[r])
        a.e(f"v_sqrt_f32 v{sq[r]}, v{sq[r]}")
        a.e("s_nop 0")
        rnd(a, sq[r])
        a.e(f"v_rcp_f32 v{rc[r]}, v{sq[r]}")
    a.e("s_nop 0")
    a.e("v_mul_u32_u24 v8, 224, v3")
    a.e("v_add_u32 v8, v8, v1")
    a.e("v_lshlrev_b32 v8, 12, v8")
    a.e("v_lshlrev_b32 v9, 3, v2")
    a.e("v_add_u32 v8, v8, v9")
    a.e("v_add_u32 v8, s13, v8")
    a.e("v_subrev_u32 v8, s13, v8")
    a.e("s_lshl_b32 s16, s12, 1")
    a.e("v_add_u32 v8, s16, v8")
    for nt in range(14):
        z = [88+4*nt+r for r in range(4)]
        for r in range(4):
            a.e(f"v_sub_f32 v{z[r]}, v{z[r]}, v{means[r]}")
        rnd2(a, z[0], z[1], 236)
        rnd2(a, z[2], z[3], 236)
        for r in range(4):
            a.e(f"v_mul_f32 v{232+r}, v{z[r]}, v{rc[r]}")
        for r in range(4):
            a.e(f"v_fma_f32 v{z[r]}, -v{232+r}, v{sq[r]}, v{z[r]}")
        for r in range(4):
            a.e(f"v_fma_f32 v{z[r]}, v{z[r]}, v{rc[r]}, v{232+r}")
        a.e(f"v_cvt_pk_bf16_f32 v236, v{z[0]}, v{z[1]}")
        a.e(f"v_cvt_pk_bf16_f32 v237, v{z[2]}, v{z[3]}")
        a.e("buffer_store_dwordx2 v[236:237], v8, s[44:47], 0 offen")
        if nt < 13:
            a.e("v_add_u32 v8, 65536, v8")
        a.e("s_nop 0")
    a.label(L_end)
    a.e("s_endpgm")
    return name, 256, 256, LDS_BYTES, 256, 224
```

```python
from common import *

def gemm_core(a, tag, BM, BN, WM, WN, K, ldP, ldQ, sP, sQ, acc0, PD=4):
    MT, NT = BM//WM//16, BN//WN//16
    nP, nQ = BM//32, BN//32
    fragP = 32
    fragQ = fragP + 8*MT
    assert fragQ + 8*NT <= acc0
    SZ = (BM+BN)*128
    a.e("v_lshrrev_b32 v1, 3, v0")
    a.e("v_and_b32 v2, 7, v0")
    a.e(f"v_mul_u32_u24 v3, {ldP}, v1")
    a.e("v_lshlrev_b32 v4, 4, v2")
    a.e("v_add_u32 v3, v3, v4")
    a.e(f"v_mul_u32_u24 v5, {ldQ}, v1")
    a.e("v_add_u32 v5, v5, v4")
    a.e("v_xor_b32 v6, v2, v1")
    a.e("v_and_b32 v6, 7, v6")
    a.e("v_lshlrev_b32 v6, 4, v6")
    a.e("v_lshlrev_b32 v7, 7, v1")
    a.e("v_add_u32 v6, v6, v7")
    a.e("v_and_b32 v8, 15, v0")
    a.e("v_lshrrev_b32 v9, 4, v0")
    a.e("v_and_b32 v9, 3, v9")
    a.e("v_lshrrev_b32 v10, 6, v0")
    if WN == 2:
        a.e("v_lshrrev_b32 v11, 1, v10")
        a.e("v_and_b32 v12, 1, v10")
    else:
        a.e("v_mov_b32 v11, v10"); a.e("v_mov_b32 v12, 0")
    a.e("v_and_b32 v13, 7, v8")
    a.e("v_xor_b32 v13, v13, v9")
    a.e("v_lshlrev_b32 v13, 4, v13")
    a.e(f"v_mul_u32_u24 v14, {(BM//WM)*128}, v11")
    a.e("v_lshlrev_b32 v15, 7, v8")
    a.e("v_add_u32 v14, v14, v15")
    a.e("v_add_u32 v14, v14, v13")
    a.e("v_xor_b32 v16, 64, v14")
    a.e(f"v_mul_u32_u24 v17, {(BN//WN)*128}, v12")
    a.e("v_add_u32 v17, v17, v15")
    a.e("v_add_u32 v17, v17, v13")
    a.e(f"v_add_u32 v17, {BM*128}, v17")
    a.e("v_xor_b32 v18, 64, v17")
    for i in range(MT*NT*4):
        a.e(f"v_mov_b32 v{acc0+i}, 0")
    NS = nP + nQ
    def gload(st):
        ab = (st % PD) * 4 * NS
        for it in range(nP):
            a.e(f"buffer_load_dwordx4 a[{ab+4*it}:{ab+4*it+3}], v3, s[{sP}:{sP+3}], s60 offen")
            if it < nP-1: a.e(f"v_add_u32 v3, {32*ldP}, v3")
        a.e(f"v_subrev_u32 v3, {32*ldP*(nP-1)}, v3")
        for it in range(nQ):
            r = ab + 4*(nP+it)
            a.e(f"buffer_load_dwordx4 a[{r}:{r+3}], v5, s[{sQ}:{sQ+3}], s61 offen")
            if it < nQ-1: a.e(f"v_add_u32 v5, {32*ldQ}, v5")
        if nQ > 1: a.e(f"v_subrev_u32 v5, {32*ldQ*(nQ-1)}, v5")
        a.e("s_add_u32 s60, s60, 128")
        a.e("s_add_u32 s61, s61, 128")
    def lwrite(st):
        buf = st & 1
        ab = (st % PD) * 4 * NS
        for it in range(nP):
            a.e(f"ds_write_b128 v6, a[{ab+4*it}:{ab+4*it+3}] offset:{buf*SZ + it*4096}")
        for it in range(nQ):
            r = ab + 4*(nP+it)
            a.e(f"ds_write_b128 v6, a[{r}:{r+3}] offset:{buf*SZ + BM*128 + it*4096}")
    def compute(buf):
        for ks in range(2):
            for mi in range(MT):
                r = fragP + 4*(ks*MT+mi)
                a.e(f"ds_read_b128 v[{r}:{r+3}], v{14 if ks == 0 else 16} offset:{buf*SZ + mi*2048}")
            for ni in range(NT):
                r = fragQ + 4*(ks*NT+ni)
                a.e(f"ds_read_b128 v[{r}:{r+3}], v{17 if ks == 0 else 18} offset:{buf*SZ + ni*2048}")
        for ks in range(2):
            a.e(f"s_waitcnt lgkmcnt({(MT+NT) if ks == 0 else 0})")
            for mi in range(MT):
                for ni in range(NT):
                    c = acc0 + 4*(mi*NT+ni)
                    p = fragP + 4*(ks*MT+mi); q = fragQ + 4*(ks*NT+ni)
                    a.e(f"v_mfma_f32_16x16x32_bf16 v[{c}:{c+3}], v[{p}:{p+3}], v[{q}:{q+3}], v[{c}:{c+3}]")
    nst = K // 64
    UN = PD if PD % 2 == 0 else 2*PD
    for st in range(PD):
        gload(st)
    a.e(f"s_waitcnt vmcnt({(PD-1)*NS})")
    lwrite(0)
    a.e("s_waitcnt lgkmcnt(0)")
    a.e("s_barrier")
    def body(st):
        gload(st + PD)
        compute(st & 1)
        a.e(f"s_waitcnt vmcnt({(PD-1)*NS})")
        lwrite(st + 1)
        a.e("s_waitcnt lgkmcnt(0)")
        a.e("s_barrier")
    if nst % UN == 0:
        a.e(f"s_mov_b32 s62, {nst//UN}")
        Lp = a.newlabel(tag + "_loop")
        a.label(Lp)
        for st in range(UN):
            body(st)
        a.e("s_sub_u32 s62, s62, 1")
        a.e("s_cmp_lg_u32 s62, 0")
        a.e(f"s_cbranch_scc1 {Lp}")
    else:
        for st in range(nst):
            body(st)
    a.e("s_waitcnt vmcnt(0)")
    a.e("s_nop 7")
    a.e("s_nop 1")
    return MT, NT, 2*SZ

def unpk(a, src, lo, hi):
    a.e(f"v_lshlrev_b32 v{lo}, 16, v{src}")
    a.e(f"v_and_b32 v{hi}, 0xffff0000, v{src}")

def gen_k3(a):
    name = "spat_kernel"
    kernel_header(a, name)
    L_end = a.newlabel("K3_end")
    a.e("s_cmp_ge_u32 s2, 224")
    a.e(f"s_cbranch_scc1 {L_end}")
    load_ptr(a, 4, P_WSP); load_ptr(a, 6, P_BSP); load_ptr(a, 8, P_WS)
    a.e("s_waitcnt lgkmcnt(0)")
    make_srd(a, 20, 8, WS_Z2T, FH*S*2)
    make_srd(a, 24, 4, 0, S*S*2)
    make_srd(a, 28, 6, 0, S*2)
    make_srd(a, 32, 8, WS_Z1, S*FH*2)
    make_srd(a, 36, 8, WS_M, S*FH*2)
    a.e("s_mul_hi_u32 s10, s2, 0x24924925")
    a.e("s_mul_i32 s11, s10, 7")
    a.e("s_sub_u32 s11, s2, s11")
    a.e("s_mul_i32 s60, s11, 524288")
    a.e("s_mul_i32 s61, s10, 262144")
    acc0 = 128
    MT, NT, lds = gemm_core(a, "K3", 128, 64, 2, 2, S, 4096, 4096, 20, 24, acc0)
    NAG = 4*24
    a.e("s_lshl_b32 s12, s10, 6")
    a.e("v_lshlrev_b32 v20, 5, v12")
    a.e("v_add_u32 v20, v20, v8")
    a.e("v_add_u32 v20, s12, v20")
    a.e("v_lshlrev_b32 v21, 1, v20")
    a.e("v_mul_u32_u24 v22, 1792, v20")
    a.e("s_lshl_b32 s13, s11, 8")
    a.e("v_lshlrev_b32 v23, 7, v11")
    a.e("v_lshlrev_b32 v24, 3, v9")
    a.e("v_add_u32 v23, v23, v24")
    a.e("v_add_u32 v22, v22, v23")
    a.e("v_add_u32 v22, s13, v22")
    for ni in range(NT):
        a.e(f"buffer_load_ushort v{26+ni}, v21, s[28:31], 0 offen offset:{32*ni}")
    for ni in range(NT):
        for mi in range(MT):
            r = 64 + 2*(ni*MT+mi)
            a.e(f"v_add_u32 v25, {ni*16*1792}, v22")
            a.e(f"buffer_load_dwordx2 v[{r}:{r+1}], v25, s[32:35], 0 offen offset:{32*mi}")
    a.e("s_waitcnt vmcnt(0)")
    for ni in range(NT):
        a.e(f"v_lshlrev_b32 v{26+ni}, 16, v{26+ni}")
    for ni in range(NT):
        for mi in range(MT):
            c = acc0 + 4*(mi*NT+ni)
            z = 64 + 2*(ni*MT+mi)
            for h in range(2):
                a.e(f"v_cvt_pk_bf16_f32 v28, v{c+2*h}, v{c+2*h+1}")
                unpk(a, 28, 29, 30)
                a.e(f"v_add_f32 v29, v29, v{26+ni}")
                a.e(f"v_add_f32 v30, v30, v{26+ni}")
                a.e("v_cvt_pk_bf16_f32 v28, v29, v30")
                unpk(a, 28, 29, 30)
                unpk(a, z+h, 31, 28)
                a.e("v_mul_f32 v29, v29, v31")
                a.e("v_mul_f32 v30, v30, v28")
                a.e(f"v_cvt_pk_bf16_f32 v{z+h}, v29, v30")
            a.e(f"v_add_u32 v25, {ni*16*1792}, v22")
            a.e(f"buffer_store_dwordx2 v[{z}:{z+1}], v25, s[36:39], 0 offen offset:{32*mi}")
    a.label(L_end)
    a.e("s_endpgm")
    return name, 224, 256, lds, 168, NAG

def gen_k4(a):
    name = "outp_kernel"
    kernel_header(a, name)
    L_end = a.newlabel("K4_end")
    a.e("s_cmp_ge_u32 s2, 224")
    a.e(f"s_cbranch_scc1 {L_end}")
    load_ptr(a, 4, P_OUT); load_ptr(a, 8, P_WS)
    a.e("s_waitcnt lgkmcnt(0)")
    make_srd(a, 20, 8, WS_WOUTT, D*FH*2)
    make_srd(a, 24, 8, WS_M, S*FH*2)
    make_srd(a, 28, 8, WS_MOD, 2688*4)
    make_srd(a, 32, 8, WS_X1, S*D*2)
    make_srd(a, 36, 4, 0, S*D*2)
    a.e("s_mul_hi_u32 s10, s2, 0x24924925")
    a.e("s_mul_i32 s11, s10, 7")
    a.e("s_sub_u32 s11, s2, s11")
    a.e("s_mul_i32 s60, s11, 114688")
    a.e("s_mul_i32 s61, s10, 114688")
    acc0 = 128
    MT, NT, lds = gemm_core(a, "K4", 64, 64, 2, 2, FH, 1792, 1792, 20, 24, acc0)
    NAG = 4*16
    a.e("s_lshl_b32 s12, s10, 6")
    a.e("v_lshlrev_b32 v20, 5, v12")
    a.e("v_add_u32 v20, v20, v8")
    a.e("v_add_u32 v20, s12, v20")
    a.e("v_mul_u32_u24 v22, 896, v20")
    a.e("s_lshl_b32 s13, s11, 7")
    a.e("v_lshlrev_b32 v23, 6, v11")
    a.e("v_lshlrev_b32 v24, 3, v9")
    a.e("v_add_u32 v23, v23, v24")
    a.e("v_add_u32 v23, s13, v23")
    a.e("v_add_u32 v22, v22, v23")
    a.e("v_lshlrev_b32 v24, 1, v23")
    a.e("s_mov_b32 s17, 8960")
    for mi in range(MT):
        a.e(f"buffer_load_dwordx4 v[{80+4*mi}:{83+4*mi}], v24, s[28:31], s17 offen offset:{64*mi}")
    for ni in range(NT):
        for mi in range(MT):
            r = 64 + 2*(ni*MT+mi)
            a.e(f"v_add_u32 v25, {ni*16*896}, v22")
            a.e(f"buffer_load_dwordx2 v[{r}:{r+1}], v25, s[32:35], 0 offen offset:{32*mi}")
    a.e("s_waitcnt vmcnt(0)")
    for ni in range(NT):
        for mi in range(MT):
            c = acc0 + 4*(mi*NT+ni)
            z = 64 + 2*(ni*MT+mi)
            for h in range(2):
                a.e(f"v_cvt_pk_bf16_f32 v28, v{c+2*h}, v{c+2*h+1}")
                unpk(a, 28, 29, 30)
                a.e(f"v_mul_f32 v29, v29, v{80+4*mi+2*h}")
                a.e(f"v_mul_f32 v30, v30, v{81+4*mi+2*h}")
                a.e("v_cvt_pk_bf16_f32 v28, v29, v30")
                unpk(a, 28, 29, 30)
                unpk(a, z+h, 31, 28)
                a.e("v_add_f32 v29, v29, v31")
                a.e("v_add_f32 v30, v30, v28")
                a.e(f"v_cvt_pk_bf16_f32 v{z+h}, v29, v30")
            a.e(f"v_add_u32 v25, {ni*16*896}, v22")
            a.e(f"buffer_store_dwordx2 v[{z}:{z+1}], v25, s[36:39], 0 offen offset:{32*mi}")
    a.label(L_end)
    a.e("s_endpgm")
    return name, 224, 256, lds, 168, NAG
```

```python
from common import *

def cvt_unpack(a, dpk, lo, hi, dlo, dhi):
    a.e(f"v_cvt_pk_bf16_f32 v{dpk}, v{lo}, v{hi}")
    a.e(f"v_lshlrev_b32 v{dlo}, 16, v{dpk}")
    a.e(f"v_and_b32 v{dhi}, 0xffff0000, v{dpk}")

def gen_k0(a):
    name = "prep_kernel"
    kernel_header(a, name)
    load_ptr(a, 4, P_K); load_ptr(a, 6, P_V); load_ptr(a, 8, P_SHIFT); load_ptr(a, 10, P_WS)
    load_ptr(a, 12, P_C); load_ptr(a, 14, P_WMOD); load_ptr(a, 16, P_WIN); load_ptr(a, 18, P_WOUT)
    a.e("s_mov_b32 s36, 0x05040100")
    a.e("s_mov_b32 s37, 0x07060302")
    a.e("s_waitcnt lgkmcnt(0)")
    L_mod, L_win, L_wout, L_end = a.newlabel("K0_mod"), a.newlabel("K0_win"), a.newlabel("K0_wout"), a.newlabel("K0_end")
    a.e("s_cmp_ge_u32 s2, 676")
    a.e(f"s_cbranch_scc1 {L_end}")
    a.e("s_cmp_ge_u32 s2, 564")
    a.e(f"s_cbranch_scc1 {L_wout}")
    a.e("s_cmp_ge_u32 s2, 340")
    a.e(f"s_cbranch_scc1 {L_win}")
    a.e("s_cmp_ge_u32 s2, 256")
    a.e(f"s_cbranch_scc1 {L_mod}")
    a.c("kv job: rows s0..s0+7, s0 = 8*wg ; thread p<224 handles channels 2p,2p+1")
    make_srd(a, 20, 4, 0, S*D*2)
    make_srd(a, 24, 6, 0, S*D*2)
    make_srd(a, 28, 8, 0, D*4*2)
    make_srd(a, 32, 10, WS_KVT, D*S*2)
    a.e("v_cmp_gt_u32 vcc, 224, v0")
    a.e("s_and_saveexec_b64 s[40:41], vcc")
    a.e(f"s_cbranch_execz {L_end}")
    a.e("v_lshlrev_b32 v1, 2, v0")
    a.e("s_mul_i32 s38, s2, 7168")
    a.e("s_sub_u32 s38, s38, 2688")
    for i in range(11):
        a.e(f"v_add_u32 v2, s38, v1")
        a.e(f"buffer_load_dword v{10+i}, v2, s[20:23], 0 offen")
        if i >= 3:
            a.e(f"buffer_load_dword v{21+i-3}, v2, s[24:27], 0 offen")
        a.e("s_add_u32 s38, s38, 896")
    a.e("v_lshlrev_b32 v2, 4, v0")
    a.e("buffer_load_dwordx4 v[30:33], v2, s[28:31], 0 offen")
    a.e("s_waitcnt vmcnt(0)")
    for ch in range(2):
        for j in range(4):
            src = 30 + ch*2 + j//2
            dst = 34 + ch*4 + j
            if j % 2 == 0:
                a.e(f"v_lshlrev_b32 v{dst}, 16, v{src}")
            else:
                a.e(f"v_and_b32 v{dst}, 0xffff0000, v{src}")
    for i in range(11):
        a.e(f"v_lshlrev_b32 v{50+i}, 16, v{10+i}")
        a.e(f"v_and_b32 v{61+i}, 0xffff0000, v{10+i}")
    for i in range(8):
        a.e(f"v_lshlrev_b32 v{72+i}, 16, v{21+i}")
        a.e(f"v_and_b32 v{80+i}, 0xffff0000, v{21+i}")
    for s in range(8):
        a.e(f"v_mul_f32 v2, v{50+s}, v{34+3}")
        a.e(f"v_mul_f32 v3, v{61+s}, v{38+3}")
        cvt_unpack(a, 4, 2, 3, 5, 6)
        for (j, idx) in [(2, s+1), (1, s+2), (0, s+3)]:
            a.e(f"v_mul_f32 v2, v{50+idx}, v{34+j}")
            a.e(f"v_mul_f32 v3, v{61+idx}, v{38+j}")
            cvt_unpack(a, 4, 2, 3, 7, 8)
            a.e("v_add_f32 v5, v5, v7")
            a.e("v_add_f32 v6, v6, v8")
            cvt_unpack(a, 4, 5, 6, 5, 6)
        a.e(f"v_mul_f32 v2, v5, v{72+s}")
        a.e(f"v_mul_f32 v3, v6, v{80+s}")
        a.e(f"v_cvt_pk_bf16_f32 v{90+s}, v2, v3")
    for j in range(4):
        a.e(f"v_perm_b32 v{100+j}, v{90+2*j+1}, v{90+2*j}, s36")
        a.e(f"v_perm_b32 v{104+j}, v{90+2*j+1}, v{90+2*j}, s37")
    a.e("v_lshlrev_b32 v2, 13, v0")
    a.e("s_lshl_b32 s39, s2, 4")
    a.e("v_add_u32 v2, s39, v2")
    a.e("buffer_store_dwordx4 v[100:103], v2, s[32:35], 0 offen")
    a.e("v_add_u32 v3, 4096, v2")
    a.e("buffer_store_dwordx4 v[104:107], v3, s[32:35], 0 offen")
    a.e(f"s_branch {L_end}")
    a.label(L_mod)
    a.c("mod job: wg j=s2-256 handles columns 32j..32j+31")
    make_srd(a, 20, 12, 0, D*2)
    make_srd(a, 24, 14, 0, D*2688*2)
    make_srd(a, 32, 10, WS_MOD, 2688*4)
    a.e("s_sub_u32 s38, s2, 256")
    a.e("s_lshl_b32 s38, s38, 6")
    a.e("v_lshrrev_b32 v1, 4, v0")
    a.e("v_and_b32 v2, 15, v0")
    a.e("v_mul_u32_u24 v3, 56, v1")
    for i in range(14):
        a.e(f"buffer_load_dword v{10+i}, v3, s[20:23], 0 offen offset:{4*i}")
    a.e("s_mov_b32 s39, 150528")
    a.e("v_mul_lo_u32 v4, v1, s39")
    a.e("v_lshlrev_b32 v5, 2, v2")
    a.e("v_add_u32 v4, v4, v5")
    a.e("v_add_u32 v4, s38, v4")
    for i in range(28):
        a.e(f"buffer_load_dword v{30+i}, v4, s[24:27], 0 offen")
        if i < 27:
            a.e("v_add_u32 v4, 5376, v4")
    a.e("s_waitcnt vmcnt(28)")
    for i in range(28):
        src = 10 + i//2
        d = 60 + i
        if i % 2 == 0:
            a.e(f"v_lshlrev_b32 v{d}, 16, v{src}")
        else:
            a.e(f"v_and_b32 v{d}, 0xffff0000, v{src}")
        a.e(f"v_mul_f32 v5, 0xbfb8aa3b, v{d}")
        a.e("v_exp_f32 v5, v5")
        a.e("s_nop 0")
        a.e("v_add_f32 v5, 1.0, v5")
        a.e("v_rcp_f32 v6, v5")
        a.e("s_nop 0")
        a.e(f"v_mul_f32 v7, v{d}, v6")
        a.e(f"v_fma_f32 v8, -v7, v5, v{d}")
        a.e(f"v_fma_f32 v7, v8, v6, v7")
        a.e(f"v_cvt_pk_bf16_f32 v7, v7, v7")
        a.e(f"v_lshlrev_b32 v{d}, 16, v7")
    a.e("s_waitcnt vmcnt(0)")
    a.e("v_mov_b32 v88, 0")
    a.e("v_mov_b32 v89, 0")
    for i in range(28):
        a.e(f"v_lshlrev_b32 v7, 16, v{30+i}")
        a.e(f"v_and_b32 v8, 0xffff0000, v{30+i}")
        a.e(f"v_fmac_f32 v88, v{60+i}, v7")
        a.e(f"v_fmac_f32 v89, v{60+i}, v8")
    a.e("v_lshlrev_b32 v7, 7, v1")
    a.e("v_lshlrev_b32 v8, 3, v2")
    a.e("v_add_u32 v7, v7, v8")
    a.e("ds_write_b64 v7, v[88:89]")
    a.e("s_waitcnt lgkmcnt(0)")
    a.e("s_barrier")
    a.e("v_cmp_gt_u32 vcc, 32, v0")
    a.e("s_and_saveexec_b64 s[40:41], vcc")
    a.e(f"s_cbranch_execz {L_end}")
    a.e("v_lshlrev_b32 v7, 2, v0")
    for i in range(16):
        a.e(f"ds_read_b32 v{10+i}, v7 offset:{128*i}")
    a.e("s_waitcnt lgkmcnt(0)")
    for i in range(1, 16):
        a.e(f"v_add_f32 v10, v10, v{10+i}")
    a.e("v_cvt_pk_bf16_f32 v10, v10, v10")
    a.e("v_lshlrev_b32 v10, 16, v10")
    a.e("s_lshl_b32 s38, s38, 1")
    a.e("v_add_u32 v7, s38, v7")
    a.e("buffer_store_dword v10, v7, s[32:35], 0 offen")
    a.e(f"s_branch {L_end}")
    def transpose_job(label, wg0, sptr, rows, cols, ws_off, nq, frag=False):
        a.label(label)
        make_srd(a, 20, sptr, 0, rows*cols*2)
        make_srd(a, 32, 10, ws_off, rows*cols*2)
        a.e("v_cmp_gt_u32 vcc, 224, v0")
        a.e("s_and_saveexec_b64 s[40:41], vcc")
        a.e(f"s_cbranch_execz {L_end}")
        a.e(f"s_sub_u32 s38, s2, {wg0}")
        if nq == 4:
            a.e("s_lshr_b32 s39, s38, 2")
            a.e("s_and_b32 s38, s38, 3")
        else:
            a.e("s_mov_b32 s39, s38")
            a.e("s_mov_b32 s38, 0")
        a.e(f"s_mul_i32 s42, s39, {8*cols*2}")
        a.e("s_mul_i32 s43, s38, 896")
        a.e("s_add_u32 s42, s42, s43")
        a.e("v_lshlrev_b32 v1, 2, v0")
        a.e("v_add_u32 v1, s42, v1")
        for i in range(8):
            a.e(f"buffer_load_dword v{10+i}, v1, s[20:23], 0 offen")
            if i < 7:
                a.e(f"v_add_u32 v1, {cols*2}, v1")
        a.e("s_waitcnt vmcnt(0)")
        for j in range(4):
            a.e(f"v_perm_b32 v{20+j}, v{10+2*j+1}, v{10+2*j}, s36")
            a.e(f"v_perm_b32 v{24+j}, v{10+2*j+1}, v{10+2*j}, s37")
        a.e("s_mul_i32 s43, s38, 224")
        a.e("v_add_u32 v1, s43, v0")
        if frag:
            KS = rows // 32
            a.e("v_lshlrev_b32 v1, 1, v1")
            a.e("v_lshrrev_b32 v2, 4, v1")
            a.e(f"v_mul_u32_u24 v2, {KS*1024}, v2")
            a.e("v_and_b32 v1, 15, v1")
            a.e("v_lshlrev_b32 v1, 4, v1")
            a.e("v_add_u32 v1, v1, v2")
            a.e("s_lshr_b32 s43, s39, 2")
            a.e("s_lshl_b32 s43, s43, 10")
            a.e("s_and_b32 s39, s39, 3")
            a.e("s_lshl_b32 s39, s39, 8")
            a.e("s_add_u32 s43, s43, s39")
            a.e("buffer_store_dwordx4 v[20:23], v1, s[32:35], s43 offen")
            a.e("buffer_store_dwordx4 v[24:27], v1, s[32:35], s43 offen offset:16")
        else:
            a.e(f"s_mov_b32 s43, {rows*4}")
            a.e("v_mul_lo_u32 v1, v1, s43")
            a.e("s_lshl_b32 s39, s39, 4")
            a.e("v_add_u32 v1, s39, v1")
            a.e("buffer_store_dwordx4 v[20:23], v1, s[32:35], 0 offen")
            a.e(f"buffer_store_dwordx4 v[24:27], v1, s[32:35], 0 offen offset:{rows*2}")
        a.e(f"s_branch {L_end}")
    transpose_job(L_win, 340, 16, D, F, WS_WINT, 4, True)
    transpose_job(L_wout, 564, 18, FH, D, WS_WOUTT, 1)
    a.label(L_end)
    a.e("s_endpgm")
    return name, 676, 256, 2048, 128
```

```python
from common import *
US = 904
HS = 912
L_U = 0
L_H2 = 14848
L_RED = L_H2 + 16*HS + 64
LDS_BYTES = L_RED + 512

def rnd(a, v):
    a.e(f"v_cvt_pk_bf16_f32 v{v}, v{v}, v{v}")
    a.e(f"v_lshlrev_b32 v{v}, 16, v{v}")

def rnd2(a, lo, hi, tmp):
    a.e(f"v_cvt_pk_bf16_f32 v{tmp}, v{lo}, v{hi}")
    a.e(f"v_lshlrev_b32 v{lo}, 16, v{tmp}")
    a.e(f"v_and_b32 v{hi}, 0xffff0000, v{tmp}")

def allreduce16(a, v, t):
    for sh in (8, 4, 2, 1):
        a.e("s_nop 1")
        a.e(f"v_add_f32_dpp v{t}, v{v}, v{v} row_ror:{sh} row_mask:0xf bank_mask:0xf")
        a.e(f"v_mov_b32 v{v}, v{t}")
    a.e("s_nop 1")
    a.e(f"v_mov_b32_dpp v{v}, v{t} row_newbcast:0 row_mask:0xf bank_mask:0xf")

def ln_stats(a, xs, n, vm, vs, vr, t0, t1):
    a.e(f"v_add_f32 v{t0}, v{xs[0]}, v{xs[1]}")
    for x in xs[2:]:
        a.e(f"v_add_f32 v{t0}, v{t0}, v{x}")
    allreduce16(a, t0, t1)
    import struct
    inv = struct.unpack('<I', struct.pack('<f', 1.0/n))[0]
    a.e(f"v_mul_f32 v{vm}, {hex(inv)}, v{t0}")
    a.e(f"v_mov_b32 v{t0}, 0")
    for x in xs:
        a.e(f"v_sub_f32 v{t1}, v{x}, v{vm}")
        a.e(f"v_fmac_f32 v{t0}, v{t1}, v{t1}")
    allreduce16(a, t0, t1)
    a.e(f"v_mul_f32 v{vs}, {hex(inv)}, v{t0}")
    rnd(a, vm)
    rnd(a, vs)
    a.e(f"v_add_f32 v{vs}, 0x3727c5ac, v{vs}")
    rnd(a, vs)
    a.e(f"v_sqrt_f32 v{vs}, v{vs}")
    a.e("s_nop 0")
    rnd(a, vs)
    a.e(f"v_rcp_f32 v{vr}, v{vs}")
    a.e("s_nop 0")

def div_pair(a, d0, d1, vs, vr, t0, t1):
    for d, t in ((d0, t0), (d1, t1)):
        a.e(f"v_mul_f32 v{t}, v{d}, v{vr}")
    for d, t in ((d0, t0), (d1, t1)):
        a.e(f"v_fma_f32 v{d}, -v{t}, v{vs}, v{d}")
    for d, t in ((d0, t0), (d1, t1)):
        a.e(f"v_fma_f32 v{d}, v{d}, v{vr}, v{t}")

def load_modvec(a, vec, dst, voff):
    a.e(f"s_mov_b32 s17, {vec*1792}")
    for i in range(7):
        a.e(f"buffer_load_dwordx4 v[{dst+4*i}:{dst+4*i+3}], v{voff}, s[24:27], s17 offen offset:{16*i}")

def gen_k2(a):
    name = "mid_kernel"
    kernel_header(a, name)
    L_end = a.newlabel("K2_end")
    import os
    a.e("s_cmp_ge_u32 s2, 128" if os.environ.get("K2X") == "2" else "s_cmp_ge_u32 s2, 256")
    a.e(f"s_cbranch_scc1 {L_end}")
    load_ptr(a, 4, P_Q); load_ptr(a, 8, P_WS)
    a.e("s_waitcnt lgkmcnt(0)")
    make_srd(a, 20, 4, 0, S*D*2)
    make_srd(a, 24, 8, WS_MOD, 2688*4)
    make_srd(a, 28, 8, WS_UT, D*S*2)
    make_srd(a, 32, 8, WS_X1, S*D*2)
    make_srd(a, 36, 8, WS_WINT, F*D*2)
    make_srd(a, 40, 8, WS_Z1, S*FH*2)
    make_srd(a, 44, 8, WS_Z2T, FH*S*2)
    a.e("s_lshr_b32 s10, s2, 1")
    a.e("s_and_b32 s11, s2, 1")
    a.e("s_lshl_b32 s12, s10, 4")
    a.e("s_lshl_b32 s13, s12, 1")
    a.e("v_lshrrev_b32 v1, 4, v0")
    a.e("v_and_b32 v2, 15, v0")
    a.e("v_add_u32 v3, s12, v1")
    a.e("v_mul_u32_u24 v3, 896, v3")
    a.e("v_mul_u32_u24 v4, 56, v2")
    a.e("v_add_u32 v3, v3, v4")
    for i in range(7):
        a.e(f"buffer_load_dwordx2 v[{32+2*i}:{33+2*i}], v3, s[20:23], 0 offen offset:{8*i}")
    a.e("v_mul_u32_u24 v5, 112, v2")
    load_modvec(a, 1, 96, 5)
    load_modvec(a, 0, 124, 5)
    for it in range(4):
        a.e(f"v_add_u32 v6, {256*it}, v0")
        a.e("v_lshrrev_b32 v7, 1, v6")
        a.e("v_and_b32 v8, 1, v6")
        a.e("v_lshlrev_b32 v7, 12, v7")
        a.e("v_lshlrev_b32 v8, 4, v8")
        a.e("v_add_u32 v7, v7, v8")
        a.e(f"buffer_load_dwordx4 v[{236+4*it}:{239+4*it}], v7, s[28:31], s13 offen")
    load_modvec(a, 2, 180, 5)
    load_modvec(a, 4, 208, 5)
    a.e("v_lshrrev_b32 v10, 6, v0")
    a.e("v_mul_u32_u24 v252, 200704, v10")
    a.e("v_and_b32 v9, 63, v0")
    a.e("v_lshlrev_b32 v9, 4, v9")
    a.e("v_add_u32 v252, v252, v9")
    a.e("s_mul_i32 s19, s11, 802816")
    def wload(nt):
        base = 56*(nt % 4)
        for ks in range(14):
            if ks % 4 == 0:
                a.e(f"s_add_u32 s18, s19, {nt*14336 + ks*1024}")
            a.e(f"buffer_load_dwordx4 a[{base+4*ks}:{base+4*ks+3}], v252, s[36:39], s18 offen offset:{1024*(ks%4)}")
    wload(0)
    a.e("s_waitcnt vmcnt(46)")
    xs = list(range(64, 92))
    for i in range(14):
        a.e(f"v_lshlrev_b32 v{64+2*i}, 16, v{32+i}")
        a.e(f"v_and_b32 v{65+2*i}, 0xffff0000, v{32+i}")
    ln_stats(a, xs, D, 12, 13, 14, 15, 16)
    a.e("s_waitcnt vmcnt(28)")
    for it in range(4):
        Lskip = a.newlabel("K2_sk")
        if it == 3:
            a.e("v_cmp_gt_u32 vcc, 128, v0")
            a.e("s_and_saveexec_b64 s[50:51], vcc")
            a.e(f"s_cbranch_execz {Lskip}")
        a.e(f"v_add_u32 v6, {256*it}, v0")
        a.e("v_lshrrev_b32 v7, 1, v6")
        a.e("v_and_b32 v8, 1, v6")
        a.e(f"v_mul_u32_u24 v8, {8*US}, v8")
        a.e("v_lshlrev_b32 v7, 1, v7")
        a.e("v_add_u32 v7, v8, v7")
        for i in range(8):
            src = 236 + 4*it + i//2
            if i % 2 == 0:
                a.e(f"ds_write_b16 v7, v{src} offset:{L_U + i*US}")
            else:
                a.e(f"ds_write_b16_d16_hi v7, v{src} offset:{L_U + i*US}")
        if it == 3:
            a.label(Lskip)
            a.e("s_or_b64 exec, exec, s[50:51]")
    wload(1)
    a.e("s_waitcnt lgkmcnt(0)")
    a.e("s_barrier")
    a.e(f"v_mul_u32_u24 v6, {US}, v1")
    a.e("v_add_u32 v6, v6, v4")
    for i in range(7):
        a.e(f"ds_read_b64 v[{46+2*i}:{47+2*i}], v6 offset:{L_U + 8*i}")
    for j in range(14):
        x0, x1_ = 64+2*j, 65+2*j
        a.e(f"v_sub_f32 v16, v{x0}, v12")
        a.e(f"v_sub_f32 v17, v{x1_}, v12")
        rnd2(a, 16, 17, 18)
        div_pair(a, 16, 17, 13, 14, 18, 19)
        rnd2(a, 16, 17, 18)
        a.e(f"v_add_f32 v18, 1.0, v{96+2*j}")
        a.e(f"v_add_f32 v19, 1.0, v{97+2*j}")
        rnd2(a, 18, 19, 20)
        a.e("v_mul_f32 v16, v16, v18")
        a.e("v_mul_f32 v17, v17, v19")
        rnd2(a, 16, 17, 18)
        a.e(f"v_add_f32 v16, v16, v{124+2*j}")
        a.e(f"v_add_f32 v17, v17, v{125+2*j}")
        rnd2(a, 16, 17, 18)
        a.e(f"v_mov_b32 v{152+2*j}, v16")
        a.e(f"v_mov_b32 v{153+2*j}, v17")
    load_modvec(a, 3, 96, 5)
    a.e("s_waitcnt vmcnt(42) lgkmcnt(0)")
    for j in range(14):
        a.e(f"v_lshlrev_b32 v18, 16, v{46+j}")
        a.e(f"v_and_b32 v19, 0xffff0000, v{46+j}")
        a.e(f"v_mul_f32 v16, v{152+2*j}, v18")
        a.e(f"v_mul_f32 v17, v{153+2*j}, v19")
        rnd2(a, 16, 17, 18)
        a.e(f"v_mul_f32 v16, v16, v{180+2*j}")
        a.e(f"v_mul_f32 v17, v17, v{181+2*j}")
        rnd2(a, 16, 17, 18)
        a.e(f"v_add_f32 v16, v16, v{64+2*j}")
        a.e(f"v_add_f32 v17, v17, v{65+2*j}")
        a.e(f"v_cvt_pk_bf16_f32 v{32+j}, v16, v17")
        a.e(f"v_lshlrev_b32 v{64+2*j}, 16, v{32+j}")
        a.e(f"v_and_b32 v{65+2*j}, 0xffff0000, v{32+j}")
    Lns = a.newlabel("K2_nostore")
    a.e("s_cmp_lg_u32 s11, 0")
    a.e(f"s_cbranch_scc1 {Lns}")
    for i in range(7):
        a.e(f"buffer_store_dwordx2 v[{32+2*i}:{33+2*i}], v3, s[32:35], 0 offen offset:{8*i}")
    a.label(Lns)
    ln_stats(a, xs, D, 12, 13, 14, 15, 16)
    a.e("s_waitcnt vmcnt(0)")
    wload(2)
    for j in range(14):
        x0, x1_ = 64+2*j, 65+2*j
        a.e(f"v_sub_f32 v16, v{x0}, v12")
        a.e(f"v_sub_f32 v17, v{x1_}, v12")
        rnd2(a, 16, 17, 18)
        div_pair(a, 16, 17, 13, 14, 18, 19)
        rnd2(a, 16, 17, 18)
        a.e(f"v_add_f32 v18, 1.0, v{208+2*j}")
        a.e(f"v_add_f32 v19, 1.0, v{209+2*j}")
        rnd2(a, 18, 19, 20)
        a.e("v_mul_f32 v16, v16, v18")
        a.e("v_mul_f32 v17, v17, v19")
        rnd2(a, 16, 17, 18)
        a.e(f"v_add_f32 v16, v16, v{96+2*j}")
        a.e(f"v_add_f32 v17, v17, v{97+2*j}")
        a.e(f"v_cvt_pk_bf16_f32 v{46+j}, v16, v17")
    a.e(f"v_mul_u32_u24 v6, {HS}, v1")
    a.e("v_add_u32 v6, v6, v4")
    for i in range(7):
        a.e(f"ds_write_b64 v6, v[{46+2*i}:{47+2*i}] offset:{L_H2 + 8*i}")
    a.e("s_waitcnt lgkmcnt(0)")
    a.e("s_barrier")
    import os
    if os.environ.get("K2X") == "1":
        a.e(f"s_branch {L_end}")
    a.e("v_and_b32 v1, 15, v0")
    a.e("v_lshrrev_b32 v2, 4, v0")
    a.e("v_and_b32 v2, 3, v2")
    a.e("v_lshrrev_b32 v3, 6, v0")
    a.e(f"v_mul_u32_u24 v4, {HS}, v1")
    a.e("v_lshlrev_b32 v5, 4, v2")
    a.e("v_add_u32 v4, v4, v5")
    for ks in range(14):
        a.e(f"ds_read_b128 v[{32+4*ks}:{35+4*ks}], v4 offset:{L_H2 + 64*ks}")
    def gemm(half):
        for nt in range(14):
            base = 56*(nt % 4)
            if nt + 3 < 14:
                wload(nt+3)
            for r in range(4):
                a.e(f"v_mov_b32 v{228+r}, 0")
            a.e("s_nop 1")
            for ks in range(14):
                if ks == 0:
                    a.e(f"s_waitcnt vmcnt({14*min(3, 13-nt)}) lgkmcnt(0)")
                hf = f"v[{32+4*ks}:{35+4*ks}]"; wf = f"a[{base+4*ks}:{base+4*ks+3}]"
                if half == 1:
                    a.e(f"v_mfma_f32_16x16x32_bf16 v[228:231], {hf}, {wf}, v[228:231]")
                else:
                    a.e(f"v_mfma_f32_16x16x32_bf16 v[228:231], {wf}, {hf}, v[228:231]")
            a.e("s_nop 7")
            a.e("s_nop 1")
            rnd2(a, 228, 229, 232)
            rnd2(a, 230, 231, 232)
            for r in range(4):
                x = 228 + r; t = 233 + r
                a.e(f"v_mul_f32 v{t}, v{x}, v{x}")
                a.e(f"v_fma_f32 v{t}, v{t}, s14, v254")
                a.e(f"v_mul_f32 v{t}, v{t}, v{x}")
                a.e(f"v_exp_f32 v{t}, v{t}")
            a.e("s_nop 0")
            for r in range(4):
                t = 233 + r
                a.e(f"v_add_f32 v{t}, 1.0, v{t}")
                a.e(f"v_rcp_f32 v{t}, v{t}")
            a.e("s_nop 0")
            for r in range(4):
                a.e(f"v_mul_f32 v{228+r}, v{228+r}, v{233+r}")
            a.e(f"v_cvt_pk_bf16_f32 v{200+2*nt}, v228, v229")
            a.e(f"v_cvt_pk_bf16_f32 v{201+2*nt}, v230, v231")
            if half == 0:
                a.e(f"buffer_store_dwordx2 v[{200+2*nt}:{201+2*nt}], v8, s[40:43], 0 offen offset:{32*nt}")
    import struct
    def f2h(x): return hex(struct.unpack('<I', struct.pack('<f', x))[0])
    c = -2.0*0.7978845608028654*1.4426950408889634
    a.e(f"s_mov_b32 s14, {f2h(0.044715*c)}")
    a.e(f"v_mov_b32 v254, {f2h(c)}")
    L_h1 = a.newlabel("K2_half1")
    a.e("s_cmp_eq_u32 s11, 1")
    a.e(f"s_cbranch_scc1 {L_h1}")
    a.e("v_add_u32 v8, s12, v1")
    a.e("v_mul_u32_u24 v8, 1792, v8")
    a.e("v_mul_u32_u24 v9, 448, v3")
    a.e("v_add_u32 v8, v8, v9")
    a.e("v_lshlrev_b32 v9, 3, v2")
    a.e("v_add_u32 v8, v8, v9")
    gemm(0)
    a.e(f"s_branch {L_end}")
    a.label(L_h1)
    gemm(1)
    def red_pass(area, regs):
        for r in range(4):
            allreduce16(a, regs[r], 236)
        a.e("v_lshlrev_b32 v9, 6, v3")
        a.e("v_lshlrev_b32 v10, 4, v2")
        a.e("v_add_u32 v9, v9, v10")
        a.e("v_cmp_eq_u32 vcc, 0, v1")
        a.e("s_and_saveexec_b64 s[50:51], vcc")
        a.e(f"ds_write_b128 v9, v[{regs[0]}:{regs[3]}] offset:{area}")
        a.e("s_or_b64 exec, exec, s[50:51]")
        a.e("s_waitcnt lgkmcnt(0)")
        a.e("s_barrier")
        for w in range(4):
            a.e(f"ds_read_b128 v[{240+4*w}:{243+4*w}], v10 offset:{area + 64*w}")
        a.e("s_waitcnt lgkmcnt(0)")
        for r in range(4):
            a.e(f"v_add_f32 v{regs[r]}, v{240+r}, v{244+r}")
            a.e(f"v_add_f32 v{regs[r]}, v{regs[r]}, v{248+r}")
            a.e(f"v_add_f32 v{regs[r]}, v{regs[r]}, v{252+r}")
    for nt in range(14):
        a.e(f"v_lshlrev_b32 v{88+4*nt}, 16, v{200+2*nt}")
        a.e(f"v_and_b32 v{89+4*nt}, 0xffff0000, v{200+2*nt}")
        a.e(f"v_lshlrev_b32 v{90+4*nt}, 16, v{201+2*nt}")
        a.e(f"v_and_b32 v{91+4*nt}, 0xffff0000, v{201+2*nt}")
    sums = [228, 229, 230, 231]
    for r in range(4):
        a.e(f"v_mov_b32 v{sums[r]}, v{88+r}")
        for nt in range(1, 14):
            a.e(f"v_add_f32 v{sums[r]}, v{sums[r]}, v{88+4*nt+r}")
    red_pass(L_RED, sums)
    means = [144, 145, 146, 147]
    for r in range(4):
        a.e(f"v_mul_f32 v{means[r]}, {f2h(1.0/896)}, v{sums[r]}")
        a.e(f"v_mov_b32 v{sums[r]}, 0")
        for nt in range(14):
            a.e(f"v_sub_f32 v236, v{88+4*nt+r}, v{means[r]}")
            a.e(f"v_fmac_f32 v{sums[r]}, v236, v236")
    red_pass(L_RED + 256, sums)
    sq = [148, 149, 150, 151]; rc = [152, 153, 154, 155]
    for r in range(4):
        a.e(f"v_mul_f32 v{sq[r]}, {f2h(1.0/896)}, v{sums[r]}")
        rnd(a, means[r])
        rnd(a, sq[r])
        a.e(f"v_add_f32 v{sq[r]}, 0x3727c5ac, v{sq[r]}")
        rnd(a, sq[r])
        a.e(f"v_sqrt_f32 v{sq[r]}, v{sq[r]}")
        a.e("s_nop 0")
        rnd(a, sq[r])
        a.e(f"v_rcp_f32 v{rc[r]}, v{sq[r]}")
    a.e("s_nop 0")
    a.e("v_mul_u32_u24 v8, 224, v3")
    a.e("v_add_u32 v8, v8, v1")
    a.e("v_lshlrev_b32 v8, 12, v8")
    a.e("v_lshlrev_b32 v9, 3, v2")
    a.e("v_add_u32 v8, v8, v9")
    a.e("v_add_u32 v8, s13, v8")
    a.e("v_subrev_u32 v8, s13, v8")
    a.e("s_lshl_b32 s16, s12, 1")
    a.e("v_add_u32 v8, s16, v8")
    for nt in range(14):
        z = [88+4*nt+r for r in range(4)]
        for r in range(4):
            a.e(f"v_sub_f32 v{z[r]}, v{z[r]}, v{means[r]}")
        rnd2(a, z[0], z[1], 236)
        rnd2(a, z[2], z[3], 236)
        for r in range(4):
            a.e(f"v_mul_f32 v{232+r}, v{z[r]}, v{rc[r]}")
        for r in range(4):
            a.e(f"v_fma_f32 v{z[r]}, -v{232+r}, v{sq[r]}, v{z[r]}")
        for r in range(4):
            a.e(f"v_fma_f32 v{z[r]}, v{z[r]}, v{rc[r]}, v{232+r}")
        a.e(f"v_cvt_pk_bf16_f32 v236, v{z[0]}, v{z[1]}")
        a.e(f"v_cvt_pk_bf16_f32 v237, v{z[2]}, v{z[3]}")
        a.e("buffer_store_dwordx2 v[236:237], v8, s[44:47], 0 offen")
        if nt < 13:
            a.e("v_add_u32 v8, 65536, v8")
        a.e("s_nop 0")
    a.label(L_end)
    a.e("s_endpgm")
    return name, 256, 256, LDS_BYTES, 256, 224
```

```python
from common import *

def gemm_core(a, tag, BM, BN, WM, WN, K, ldP, ldQ, sP, sQ, acc0, PD=4):
    MT, NT = BM//WM//16, BN//WN//16
    nP, nQ = BM//32, BN//32
    fragP = 32
    fragQ = fragP + 8*MT
    assert fragQ + 8*NT <= acc0
    SZ = (BM+BN)*128
    a.e("v_lshrrev_b32 v1, 3, v0")
    a.e("v_and_b32 v2, 7, v0")
    a.e(f"v_mul_u32_u24 v3, {ldP}, v1")
    a.e("v_lshlrev_b32 v4, 4, v2")
    a.e("v_add_u32 v3, v3, v4")
    a.e(f"v_mul_u32_u24 v5, {ldQ}, v1")
    a.e("v_add_u32 v5, v5, v4")
    a.e("v_xor_b32 v6, v2, v1")
    a.e("v_and_b32 v6, 7, v6")
    a.e("v_lshlrev_b32 v6, 4, v6")
    a.e("v_lshlrev_b32 v7, 7, v1")
    a.e("v_add_u32 v6, v6, v7")
    a.e("v_and_b32 v8, 15, v0")
    a.e("v_lshrrev_b32 v9, 4, v0")
    a.e("v_and_b32 v9, 3, v9")
    a.e("v_lshrrev_b32 v10, 6, v0")
    if WN == 2:
        a.e("v_lshrrev_b32 v11, 1, v10")
        a.e("v_and_b32 v12, 1, v10")
    else:
        a.e("v_mov_b32 v11, v10"); a.e("v_mov_b32 v12, 0")
    a.e("v_and_b32 v13, 7, v8")
    a.e("v_xor_b32 v13, v13, v9")
    a.e("v_lshlrev_b32 v13, 4, v13")
    a.e(f"v_mul_u32_u24 v14, {(BM//WM)*128}, v11")
    a.e("v_lshlrev_b32 v15, 7, v8")
    a.e("v_add_u32 v14, v14, v15")
    a.e("v_add_u32 v14, v14, v13")
    a.e("v_xor_b32 v16, 64, v14")
    a.e(f"v_mul_u32_u24 v17, {(BN//WN)*128}, v12")
    a.e("v_add_u32 v17, v17, v15")
    a.e("v_add_u32 v17, v17, v13")
    a.e(f"v_add_u32 v17, {BM*128}, v17")
    a.e("v_xor_b32 v18, 64, v17")
    for i in range(MT*NT*4):
        a.e(f"v_mov_b32 v{acc0+i}, 0")
    NS = nP + nQ
    def gload(st):
        ab = (st % PD) * 4 * NS
        for it in range(nP):
            a.e(f"buffer_load_dwordx4 a[{ab+4*it}:{ab+4*it+3}], v3, s[{sP}:{sP+3}], s60 offen")
            if it < nP-1: a.e(f"v_add_u32 v3, {32*ldP}, v3")
        a.e(f"v_subrev_u32 v3, {32*ldP*(nP-1)}, v3")
        for it in range(nQ):
            r = ab + 4*(nP+it)
            a.e(f"buffer_load_dwordx4 a[{r}:{r+3}], v5, s[{sQ}:{sQ+3}], s61 offen")
            if it < nQ-1: a.e(f"v_add_u32 v5, {32*ldQ}, v5")
        if nQ > 1: a.e(f"v_subrev_u32 v5, {32*ldQ*(nQ-1)}, v5")
        a.e("s_add_u32 s60, s60, 128")
        a.e("s_add_u32 s61, s61, 128")
    def lwrite(st):
        buf = st & 1
        ab = (st % PD) * 4 * NS
        for it in range(nP):
            a.e(f"ds_write_b128 v6, a[{ab+4*it}:{ab+4*it+3}] offset:{buf*SZ + it*4096}")
        for it in range(nQ):
            r = ab + 4*(nP+it)
            a.e(f"ds_write_b128 v6, a[{r}:{r+3}] offset:{buf*SZ + BM*128 + it*4096}")
    def compute(buf):
        for ks in range(2):
            for mi in range(MT):
                r = fragP + 4*(ks*MT+mi)
                a.e(f"ds_read_b128 v[{r}:{r+3}], v{14 if ks == 0 else 16} offset:{buf*SZ + mi*2048}")
            for ni in range(NT):
                r = fragQ + 4*(ks*NT+ni)
                a.e(f"ds_read_b128 v[{r}:{r+3}], v{17 if ks == 0 else 18} offset:{buf*SZ + ni*2048}")
        for ks in range(2):
            a.e(f"s_waitcnt lgkmcnt({(MT+NT) if ks == 0 else 0})")
            for mi in range(MT):
                for ni in range(NT):
                    c = acc0 + 4*(mi*NT+ni)
                    p = fragP + 4*(ks*MT+mi); q = fragQ + 4*(ks*NT+ni)
                    a.e(f"v_mfma_f32_16x16x32_bf16 v[{c}:{c+3}], v[{p}:{p+3}], v[{q}:{q+3}], v[{c}:{c+3}]")
    nst = K // 64
    UN = PD if PD % 2 == 0 else 2*PD
    for st in range(PD):
        gload(st)
    a.e(f"s_waitcnt vmcnt({(PD-1)*NS})")
    lwrite(0)
    a.e("s_waitcnt lgkmcnt(0)")
    a.e("s_barrier")
    def body(st):
        gload(st + PD)
        compute(st & 1)
        a.e(f"s_waitcnt vmcnt({(PD-1)*NS})")
        lwrite(st + 1)
        a.e("s_waitcnt lgkmcnt(0)")
        a.e("s_barrier")
    if nst % UN == 0:
        a.e(f"s_mov_b32 s62, {nst//UN}")
        Lp = a.newlabel(tag + "_loop")
        a.label(Lp)
        for st in range(UN):
            body(st)
        a.e("s_sub_u32 s62, s62, 1")
        a.e("s_cmp_lg_u32 s62, 0")
        a.e(f"s_cbranch_scc1 {Lp}")
    else:
        for st in range(nst):
            body(st)
    a.e("s_waitcnt vmcnt(0)")
    a.e("s_nop 7")
    a.e("s_nop 1")
    return MT, NT, 2*SZ

def unpk(a, src, lo, hi):
    a.e(f"v_lshlrev_b32 v{lo}, 16, v{src}")
    a.e(f"v_and_b32 v{hi}, 0xffff0000, v{src}")

def gen_k3(a):
    name = "spat_kernel"
    kernel_header(a, name)
    L_end = a.newlabel("K3_end")
    a.e("s_cmp_ge_u32 s2, 224")
    a.e(f"s_cbranch_scc1 {L_end}")
    load_ptr(a, 4, P_WSP); load_ptr(a, 6, P_BSP); load_ptr(a, 8, P_WS)
    a.e("s_waitcnt lgkmcnt(0)")
    make_srd(a, 20, 8, WS_Z2T, FH*S*2)
    make_srd(a, 24, 4, 0, S*S*2)
    make_srd(a, 28, 6, 0, S*2)
    make_srd(a, 32, 8, WS_Z1, S*FH*2)
    make_srd(a, 36, 8, WS_M, S*FH*2)
    a.e("s_lshr_b32 s14, s2, 3")
    a.e("s_mul_hi_u32 s10, s14, 0x24924925")
    a.e("s_mul_i32 s11, s10, 7")
    a.e("s_sub_u32 s11, s14, s11")
    a.e("s_and_b32 s14, s2, 7")
    a.e("s_lshl_b32 s14, s14, 2")
    a.e("s_add_u32 s10, s10, s14")
    a.e("s_mul_i32 s60, s11, 524288")
    a.e("s_mul_i32 s61, s10, 262144")
    acc0 = 128
    MT, NT, lds = gemm_core(a, "K3", 128, 64, 2, 2, S, 4096, 4096, 20, 24, acc0)
    NAG = 4*24
    a.e("s_lshl_b32 s12, s10, 6")
    a.e("v_lshlrev_b32 v20, 5, v12")
    a.e("v_add_u32 v20, v20, v8")
    a.e("v_add_u32 v20, s12, v20")
    a.e("v_lshlrev_b32 v21, 1, v20")
    a.e("v_mul_u32_u24 v22, 1792, v20")
    a.e("s_lshl_b32 s13, s11, 8")
    a.e("v_lshlrev_b32 v23, 7, v11")
    a.e("v_lshlrev_b32 v24, 3, v9")
    a.e("v_add_u32 v23, v23, v24")
    a.e("v_add_u32 v22, v22, v23")
    a.e("v_add_u32 v22, s13, v22")
    for ni in range(NT):
        a.e(f"buffer_load_ushort v{26+ni}, v21, s[28:31], 0 offen offset:{32*ni}")
    for ni in range(NT):
        for mi in range(MT):
            r = 64 + 2*(ni*MT+mi)
            a.e(f"v_add_u32 v25, {ni*16*1792}, v22")
            a.e(f"buffer_load_dwordx2 v[{r}:{r+1}], v25, s[32:35], 0 offen offset:{32*mi}")
    a.e("s_waitcnt vmcnt(0)")
    for ni in range(NT):
        a.e(f"v_lshlrev_b32 v{26+ni}, 16, v{26+ni}")
    for ni in range(NT):
        for mi in range(MT):
            c = acc0 + 4*(mi*NT+ni)
            z = 64 + 2*(ni*MT+mi)
            for h in range(2):
                a.e(f"v_cvt_pk_bf16_f32 v28, v{c+2*h}, v{c+2*h+1}")
                unpk(a, 28, 29, 30)
                a.e(f"v_add_f32 v29, v29, v{26+ni}")
                a.e(f"v_add_f32 v30, v30, v{26+ni}")
                a.e("v_cvt_pk_bf16_f32 v28, v29, v30")
                unpk(a, 28, 29, 30)
                unpk(a, z+h, 31, 28)
                a.e("v_mul_f32 v29, v29, v31")
                a.e("v_mul_f32 v30, v30, v28")
                a.e(f"v_cvt_pk_bf16_f32 v{z+h}, v29, v30")
            a.e(f"v_add_u32 v25, {ni*16*1792}, v22")
            a.e(f"buffer_store_dwordx2 v[{z}:{z+1}], v25, s[36:39], 0 offen offset:{32*mi}")
    a.label(L_end)
    a.e("s_endpgm")
    return name, 224, 256, lds, 168, NAG

def gen_k4(a):
    name = "outp_kernel"
    kernel_header(a, name)
    L_end = a.newlabel("K4_end")
    a.e("s_cmp_ge_u32 s2, 224")
    a.e(f"s_cbranch_scc1 {L_end}")
    load_ptr(a, 4, P_OUT); load_ptr(a, 8, P_WS)
    a.e("s_waitcnt lgkmcnt(0)")
    make_srd(a, 20, 8, WS_WOUTT, D*FH*2)
    make_srd(a, 24, 8, WS_M, S*FH*2)
    make_srd(a, 28, 8, WS_MOD, 2688*4)
    make_srd(a, 32, 8, WS_X1, S*D*2)
    make_srd(a, 36, 4, 0, S*D*2)
    a.e("s_lshr_b32 s14, s2, 3")
    a.e("s_mul_hi_u32 s10, s14, 0x24924925")
    a.e("s_mul_i32 s11, s10, 7")
    a.e("s_sub_u32 s11, s14, s11")
    a.e("s_and_b32 s14, s2, 7")
    a.e("s_lshl_b32 s14, s14, 2")
    a.e("s_add_u32 s10, s10, s14")
    a.e("s_mul_i32 s60, s11, 114688")
    a.e("s_mul_i32 s61, s10, 114688")
    acc0 = 128
    MT, NT, lds = gemm_core(a, "K4", 64, 64, 2, 2, FH, 1792, 1792, 20, 24, acc0)
    NAG = 4*16
    a.e("s_lshl_b32 s12, s10, 6")
    a.e("v_lshlrev_b32 v20, 5, v12")
    a.e("v_add_u32 v20, v20, v8")
    a.e("v_add_u32 v20, s12, v20")
    a.e("v_mul_u32_u24 v22, 896, v20")
    a.e("s_lshl_b32 s13, s11, 7")
    a.e("v_lshlrev_b32 v23, 6, v11")
    a.e("v_lshlrev_b32 v24, 3, v9")
    a.e("v_add_u32 v23, v23, v24")
    a.e("v_add_u32 v23, s13, v23")
    a.e("v_add_u32 v22, v22, v23")
    a.e("v_lshlrev_b32 v24, 1, v23")
    a.e("s_mov_b32 s17, 8960")
    for mi in range(MT):
        a.e(f"buffer_load_dwordx4 v[{80+4*mi}:{83+4*mi}], v24, s[28:31], s17 offen offset:{64*mi}")
    for ni in range(NT):
        for mi in range(MT):
            r = 64 + 2*(ni*MT+mi)
            a.e(f"v_add_u32 v25, {ni*16*896}, v22")
            a.e(f"buffer_load_dwordx2 v[{r}:{r+1}], v25, s[32:35], 0 offen offset:{32*mi}")
    a.e("s_waitcnt vmcnt(0)")
    for ni in range(NT):
        for mi in range(MT):
            c = acc0 + 4*(mi*NT+ni)
            z = 64 + 2*(ni*MT+mi)
            for h in range(2):
                a.e(f"v_cvt_pk_bf16_f32 v28, v{c+2*h}, v{c+2*h+1}")
                unpk(a, 28, 29, 30)
                a.e(f"v_mul_f32 v29, v29, v{80+4*mi+2*h}")
                a.e(f"v_mul_f32 v30, v30, v{81+4*mi+2*h}")
                a.e("v_cvt_pk_bf16_f32 v28, v29, v30")
                unpk(a, 28, 29, 30)
                unpk(a, z+h, 31, 28)
                a.e("v_add_f32 v29, v29, v31")
                a.e("v_add_f32 v30, v30, v28")
                a.e(f"v_cvt_pk_bf16_f32 v{z+h}, v29, v30")
            a.e(f"v_add_u32 v25, {ni*16*896}, v22")
            a.e(f"buffer_store_dwordx2 v[{z}:{z+1}], v25, s[36:39], 0 offen offset:{32*mi}")
    a.label(L_end)
    a.e("s_endpgm")
    return name, 224, 256, lds, 168, NAG
```

```python
from common import *

def gemm_core(a, tag, BM, BN, WM, WN, K, ldP, ldQ, sP, sQ, acc0, PD=4):
    MT, NT = BM//WM//16, BN//WN//16
    nP, nQ = BM//32, BN//32
    fragP = 32
    fragQ = fragP + 8*MT
    assert fragQ + 8*NT <= acc0
    SZ = (BM+BN)*128
    a.e("v_lshrrev_b32 v1, 3, v0")
    a.e("v_and_b32 v2, 7, v0")
    a.e(f"v_mul_u32_u24 v3, {ldP}, v1")
    a.e("v_lshlrev_b32 v4, 4, v2")
    a.e("v_add_u32 v3, v3, v4")
    a.e(f"v_mul_u32_u24 v5, {ldQ}, v1")
    a.e("v_add_u32 v5, v5, v4")
    a.e("v_xor_b32 v6, v2, v1")
    a.e("v_and_b32 v6, 7, v6")
    a.e("v_lshlrev_b32 v6, 4, v6")
    a.e("v_lshlrev_b32 v7, 7, v1")
    a.e("v_add_u32 v6, v6, v7")
    a.e(f"v_add_u32 v19, {BM*128}, v6")
    a.e("v_and_b32 v8, 15, v0")
    a.e("v_lshrrev_b32 v9, 4, v0")
    a.e("v_and_b32 v9, 3, v9")
    a.e("v_lshrrev_b32 v10, 6, v0")
    if WN == 2:
        a.e("v_lshrrev_b32 v11, 1, v10")
        a.e("v_and_b32 v12, 1, v10")
    else:
        a.e("v_mov_b32 v11, v10"); a.e("v_mov_b32 v12, 0")
    a.e("v_and_b32 v13, 7, v8")
    a.e("v_xor_b32 v13, v13, v9")
    a.e("v_lshlrev_b32 v13, 4, v13")
    a.e(f"v_mul_u32_u24 v14, {(BM//WM)*128}, v11")
    a.e("v_lshlrev_b32 v15, 7, v8")
    a.e("v_add_u32 v14, v14, v15")
    a.e("v_add_u32 v14, v14, v13")
    a.e("v_xor_b32 v16, 64, v14")
    a.e(f"v_mul_u32_u24 v17, {(BN//WN)*128}, v12")
    a.e("v_add_u32 v17, v17, v15")
    a.e("v_add_u32 v17, v17, v13")
    a.e(f"v_add_u32 v17, {BM*128}, v17")
    a.e("v_xor_b32 v18, 64, v17")
    for i in range(MT*NT*4):
        a.e(f"v_mov_b32 v{acc0+i}, 0")
    NS = nP + nQ
    def gload(st):
        ab = (st % PD) * 4 * NS
        for it in range(nP):
            a.e(f"buffer_load_dwordx4 a[{ab+4*it}:{ab+4*it+3}], v3, s[{sP}:{sP+3}], s60 offen")
            if it < nP-1: a.e(f"v_add_u32 v3, {32*ldP}, v3")
        a.e(f"v_subrev_u32 v3, {32*ldP*(nP-1)}, v3")
        for it in range(nQ):
            r = ab + 4*(nP+it)
            a.e(f"buffer_load_dwordx4 a[{r}:{r+3}], v5, s[{sQ}:{sQ+3}], s61 offen")
            if it < nQ-1: a.e(f"v_add_u32 v5, {32*ldQ}, v5")
        if nQ > 1: a.e(f"v_subrev_u32 v5, {32*ldQ*(nQ-1)}, v5")
        a.e("s_add_u32 s60, s60, 128")
        a.e("s_add_u32 s61, s61, 128")
    def lwrite(st):
        buf = st % 3
        ab = (st % PD) * 4 * NS
        for it in range(nP):
            a.e(f"ds_write_b128 v6, a[{ab+4*it}:{ab+4*it+3}] offset:{buf*SZ + it*4096}")
        for it in range(nQ):
            r = ab + 4*(nP+it)
            a.e(f"ds_write_b128 v19, a[{r}:{r+3}] offset:{buf*SZ + it*4096}")
    def reads(buf, ks):
        for mi in range(MT):
            r = fragP + 4*(ks*MT+mi)
            a.e(f"ds_read_b128 v[{r}:{r+3}], v{14 if ks == 0 else 16} offset:{buf*SZ + mi*2048}")
        for ni in range(NT):
            r = fragQ + 4*(ks*NT+ni)
            a.e(f"ds_read_b128 v[{r}:{r+3}], v{17 if ks == 0 else 18} offset:{buf*SZ + ni*2048}")
    def mfmas(ks):
        for mi in range(MT):
            for ni in range(NT):
                c = acc0 + 4*(mi*NT+ni)
                p = fragP + 4*(ks*MT+mi); q = fragQ + 4*(ks*NT+ni)
                a.e(f"v_mfma_f32_16x16x32_bf16 v[{c}:{c+3}], v[{p}:{p+3}], v[{q}:{q+3}], v[{c}:{c+3}]")
    nst = K // 64
    for st in range(PD):
        gload(st)
    a.e(f"s_waitcnt vmcnt({(PD-2)*NS})")
    lwrite(0)
    lwrite(1)
    a.e("s_waitcnt lgkmcnt(0)")
    a.e("s_barrier")
    reads(0, 0)
    FR = MT + NT
    for st in range(nst):
        reads(st % 3, 1)
        gload(st + PD)
        a.e(f"s_waitcnt vmcnt({(PD-2)*NS}) lgkmcnt({FR})")
        lwrite(st + 2)
        mfmas(0)
        reads((st+1) % 3, 0)
        a.e(f"s_waitcnt lgkmcnt({NS+FR})")
        mfmas(1)
        a.e(f"s_waitcnt lgkmcnt({FR})")
        a.e("s_barrier")
    a.e("s_waitcnt lgkmcnt(0)")
    a.e("s_waitcnt vmcnt(0)")
    a.e("s_nop 7")
    a.e("s_nop 1")
    return MT, NT, 3*SZ

def unpk(a, src, lo, hi):
    a.e(f"v_lshlrev_b32 v{lo}, 16, v{src}")
    a.e(f"v_and_b32 v{hi}, 0xffff0000, v{src}")

def gen_k3(a):
    name = "spat_kernel"
    kernel_header(a, name)
    L_end = a.newlabel("K3_end")
    a.e("s_cmp_ge_u32 s2, 224")
    a.e(f"s_cbranch_scc1 {L_end}")
    load_ptr(a, 4, P_WSP); load_ptr(a, 6, P_BSP); load_ptr(a, 8, P_WS)
    a.e("s_waitcnt lgkmcnt(0)")
    make_srd(a, 20, 8, WS_Z2T, FH*S*2)
    make_srd(a, 24, 4, 0, S*S*2)
    make_srd(a, 28, 6, 0, S*2)
    make_srd(a, 32, 8, WS_Z1, S*FH*2)
    make_srd(a, 36, 8, WS_M, S*FH*2)
    a.e("s_lshr_b32 s14, s2, 3")
    a.e("s_mul_hi_u32 s10, s14, 0x24924925")
    a.e("s_mul_i32 s11, s10, 7")
    a.e("s_sub_u32 s11, s14, s11")
    a.e("s_and_b32 s14, s2, 7")
    a.e("s_lshl_b32 s14, s14, 2")
    a.e("s_add_u32 s10, s10, s14")
    a.e("s_mul_i32 s60, s11, 524288")
    a.e("s_mul_i32 s61, s10, 262144")
    acc0 = 128
    MT, NT, lds = gemm_core(a, "K3", 128, 64, 2, 2, S, 4096, 4096, 20, 24, acc0)
    NAG = 4*24
    a.e("s_lshl_b32 s12, s10, 6")
    a.e("v_lshlrev_b32 v20, 5, v12")
    a.e("v_add_u32 v20, v20, v8")
    a.e("v_add_u32 v20, s12, v20")
    a.e("v_lshlrev_b32 v21, 1, v20")
    a.e("v_mul_u32_u24 v22, 1792, v20")
    a.e("s_lshl_b32 s13, s11, 8")
    a.e("v_lshlrev_b32 v23, 7, v11")
    a.e("v_lshlrev_b32 v24, 3, v9")
    a.e("v_add_u32 v23, v23, v24")
    a.e("v_add_u32 v22, v22, v23")
    a.e("v_add_u32 v22, s13, v22")
    for ni in range(NT):
        a.e(f"buffer_load_ushort v{26+ni}, v21, s[28:31], 0 offen offset:{32*ni}")
    for ni in range(NT):
        for mi in range(MT):
            r = 64 + 2*(ni*MT+mi)
            a.e(f"v_add_u32 v25, {ni*16*1792}, v22")
            a.e(f"buffer_load_dwordx2 v[{r}:{r+1}], v25, s[32:35], 0 offen offset:{32*mi}")
    a.e("s_waitcnt vmcnt(0)")
    for ni in range(NT):
        a.e(f"v_lshlrev_b32 v{26+ni}, 16, v{26+ni}")
    for ni in range(NT):
        for mi in range(MT):
            c = acc0 + 4*(mi*NT+ni)
            z = 64 + 2*(ni*MT+mi)
            for h in range(2):
                a.e(f"v_cvt_pk_bf16_f32 v28, v{c+2*h}, v{c+2*h+1}")
                unpk(a, 28, 29, 30)
                a.e(f"v_add_f32 v29, v29, v{26+ni}")
                a.e(f"v_add_f32 v30, v30, v{26+ni}")
                a.e("v_cvt_pk_bf16_f32 v28, v29, v30")
                unpk(a, 28, 29, 30)
                unpk(a, z+h, 31, 28)
                a.e("v_mul_f32 v29, v29, v31")
                a.e("v_mul_f32 v30, v30, v28")
                a.e(f"v_cvt_pk_bf16_f32 v{z+h}, v29, v30")
            a.e(f"v_add_u32 v25, {ni*16*1792}, v22")
            a.e(f"buffer_store_dwordx2 v[{z}:{z+1}], v25, s[36:39], 0 offen offset:{32*mi}")
    a.label(L_end)
    a.e("s_endpgm")
    return name, 224, 256, lds, 168, NAG

def gen_k4(a):
    name = "outp_kernel"
    kernel_header(a, name)
    L_end = a.newlabel("K4_end")
    a.e("s_cmp_ge_u32 s2, 224")
    a.e(f"s_cbranch_scc1 {L_end}")
    load_ptr(a, 4, P_OUT); load_ptr(a, 8, P_WS)
    a.e("s_waitcnt lgkmcnt(0)")
    make_srd(a, 20, 8, WS_WOUTT, D*FH*2)
    make_srd(a, 24, 8, WS_M, S*FH*2)
    make_srd(a, 28, 8, WS_MOD, 2688*4)
    make_srd(a, 32, 8, WS_X1, S*D*2)
    make_srd(a, 36, 4, 0, S*D*2)
    a.e("s_lshr_b32 s14, s2, 3")
    a.e("s_mul_hi_u32 s10, s14, 0x24924925")
    a.e("s_mul_i32 s11, s10, 7")
    a.e("s_sub_u32 s11, s14, s11")
    a.e("s_and_b32 s14, s2, 7")
    a.e("s_lshl_b32 s14, s14, 2")
    a.e("s_add_u32 s10, s10, s14")
    a.e("s_mul_i32 s60, s11, 114688")
    a.e("s_mul_i32 s61, s10, 114688")
    acc0 = 128
    MT, NT, lds = gemm_core(a, "K4", 64, 64, 2, 2, FH, 1792, 1792, 20, 24, acc0)
    NAG = 4*16
    a.e("s_lshl_b32 s12, s10, 6")
    a.e("v_lshlrev_b32 v20, 5, v12")
    a.e("v_add_u32 v20, v20, v8")
    a.e("v_add_u32 v20, s12, v20")
    a.e("v_mul_u32_u24 v22, 896, v20")
    a.e("s_lshl_b32 s13, s11, 7")
    a.e("v_lshlrev_b32 v23, 6, v11")
    a.e("v_lshlrev_b32 v24, 3, v9")
    a.e("v_add_u32 v23, v23, v24")
    a.e("v_add_u32 v23, s13, v23")
    a.e("v_add_u32 v22, v22, v23")
    a.e("v_lshlrev_b32 v24, 1, v23")
    a.e("s_mov_b32 s17, 8960")
    for mi in range(MT):
        a.e(f"buffer_load_dwordx4 v[{80+4*mi}:{83+4*mi}], v24, s[28:31], s17 offen offset:{64*mi}")
    for ni in range(NT):
        for mi in range(MT):
            r = 64 + 2*(ni*MT+mi)
            a.e(f"v_add_u32 v25, {ni*16*896}, v22")
            a.e(f"buffer_load_dwordx2 v[{r}:{r+1}], v25, s[32:35], 0 offen offset:{32*mi}")
    a.e("s_waitcnt vmcnt(0)")
    for ni in range(NT):
        for mi in range(MT):
            c = acc0 + 4*(mi*NT+ni)
            z = 64 + 2*(ni*MT+mi)
            for h in range(2):
                a.e(f"v_cvt_pk_bf16_f32 v28, v{c+2*h}, v{c+2*h+1}")
                unpk(a, 28, 29, 30)
                a.e(f"v_mul_f32 v29, v29, v{80+4*mi+2*h}")
                a.e(f"v_mul_f32 v30, v30, v{81+4*mi+2*h}")
                a.e("v_cvt_pk_bf16_f32 v28, v29, v30")
                unpk(a, 28, 29, 30)
                unpk(a, z+h, 31, 28)
                a.e("v_add_f32 v29, v29, v31")
                a.e("v_add_f32 v30, v30, v28")
                a.e(f"v_cvt_pk_bf16_f32 v{z+h}, v29, v30")
            a.e(f"v_add_u32 v25, {ni*16*896}, v22")
            a.e(f"buffer_store_dwordx2 v[{z}:{z+1}], v25, s[36:39], 0 offen offset:{32*mi}")
    a.label(L_end)
    a.e("s_endpgm")
    return name, 224, 256, lds, 168, NAG
```
